```python
import torch

def _softmax(x, axis=-1):
    return torch.softmax(x, dim=axis)
def _gelu(x):
    return torch.nn.functional.gelu(x, approximate="tanh")
def _silu(x):
    return torch.nn.functional.silu(x)
def _sigmoid(x):
    return torch.sigmoid(x)
def _layernorm(x, axis=-1, eps=1e-5):
    m = x.mean(dim=axis, keepdim=True)
    v = x.var(dim=axis, keepdim=True, unbiased=False)
    return (x - m) / torch.sqrt(v + eps)
def _scatter_add(tgt, idx, src, axis=0):
    return tgt.clone().index_add_(axis, idx, src)
def _segment_sum(src, seg, n):
    out = torch.zeros((n,) + src.shape[1:], dtype=src.dtype)
    return out.index_add_(0, seg, src)
def _pad(x, pw):
    flat = tuple(v for pair in reversed(pw) for v in pair)
    return torch.nn.functional.pad(x, flat)

kernel_name = 'standalone__mha_softmax__near_ridge'

def setup_inputs():

    _w = (lambda a: (lambda t: t.to(torch.bfloat16) if t.is_floating_point() else t)(torch.as_tensor(a)))
    B, H, Sq, Sk, D = 8, 16, 384, 2048, 256
    return {
        "q": _w((lambda *s: torch.randn(*s, dtype=torch.bfloat16) * 0.8)(B, H, Sq, D)),
        "k": _w((lambda *s: torch.randn(*s, dtype=torch.bfloat16) * 0.8)(B, H, Sk, D)),
        "v": _w((lambda *s: torch.randn(*s, dtype=torch.bfloat16) * 0.05)(B, H, Sk, D)),
    }

def reference(q, k, v):
    scale = q.shape[-1] ** -0.5
    scores = torch.einsum("bhqd,bhkd->bhqk", q, k) * scale
    p = _softmax(scores, axis=-1)
    return torch.einsum("bhqk,bhkd->bhqd", p, v)
```

```python
import sys, math, struct

NAME = "standalone__mha_softmax__near_ridge_kernel"

def f2u(x):
    return struct.unpack("<I", struct.pack("<f", x))[0]

class Cfg:
    c1 = 44
    c2 = 150
    bY = 67
    bX = 173
    lat = 7
    dmaA = [3, 11, 19, 23, 31, 39, 43, 51]
    dmaB = [74, 83, 92, 101, 110, 119, 128, 137]
    stamp = False
    prefetch_code = True
    thr = 2.0**20

BLK = 1040
SLOT = 32 * BLK
KS = [0, SLOT]
VS = [2 * SLOT, 3 * SLOT]
LDS_BYTES = 4 * SLOT

def Qr(qt, t):  b = 32 * qt + 4 * t; return f"v[{b}:{b+3}]"
S0 = 96
def Sr(ks, qt): b = S0 + 12 * ks + 4 * qt; return f"v[{b}:{b+3}]"
def Se(ks, qt, r): return f"v{S0 + 12 * ks + 4 * qt + r}"
P0 = 144
def Pr(par, kk, qt): b = P0 + 24 * par + 12 * kk + 4 * qt; return f"v[{b}:{b+3}]"
def Pe(par, kk, qt, j): return f"v{P0 + 24 * par + 12 * kk + 4 * qt + j}"
ET0 = 192; NET = 8
def Lr(hf, qt): return f"v{200 + 3 * hf + qt}"
def NM(qt): return f"v{206 + qt}"
vK, vV, vDK, vDV = "v209", "v210", "v211", "v212"
vCHK = "v213"
T0 = 214
def Or(dt, qt): b = 12 * dt + 4 * qt; return f"a[{b}:{b+3}]"
def Oe(dt, qt, r): return f"a{12 * dt + 4 * qt + r}"
F0 = 192
def Fr(slot): b = F0 + 4 * slot; return f"a[{b}:{b+3}]"
def Fh(slot, u): b = F0 + 4 * slot + 2 * u; return f"a[{b}:{b+1}]"

sK, sV, sQ, sO = "s[4:7]", "s[8:11]", "s[12:15]", "s[16:19]"
sW, sKM, sVM, sKoff, sVoff, sC, sThr, sCnt = "s20", "s21", "s22", "s23", "s24", "s26", "s27", "s28"
sRet = "s[30:31]"

def mfma_desc(g):
    if g < 96:
        ks, rem = divmod(g, 24); qt, t = divmod(rem, 8)
        return ("QK", ks, qt, t)
    g -= 96
    dt, rem = divmod(g, 6); qt, kk = divmod(rem, 2)
    return ("PV", dt, qt, kk)

def build_schedule(cfg):
    N = 192
    ds = {}
    for t in range(8):
        ds[2 + 2 * t] = ("K", 1, t)
        ds[26 + 2 * t] = ("K", 2, t)
        ds[46 + 2 * t] = ("K", 3, t)
        ds[175 + 2 * t] = ("K0", 0, t)
    for n in range(64):
        ds[72 + (3 * n) // 2] = ("V", n >> 2, (n >> 1) & 1, n & 1)
    dma = {}
    for n, g in enumerate(cfg.dmaA): dma[g] = ("DV", n)
    for n, g in enumerate(cfg.dmaB): dma[g] = ("DK", n)
    for g in dma:
        assert g not in ds, g
    scal = {g: [] for g in range(N)}
    for g, d in dma.items():
        scal[(g - 1) % N].append(("m0", d))
        if d[1] in (3, 7):
            scal[(g + 1) % N].append(("soff", d))
    scal[cfg.bY].append(("bwait",)); scal[cfg.bY + 1].append(("barrier",))
    scal[cfg.bX].append(("bwait",)); scal[cfg.bX + 1].append(("barrier",))
    scal[188].append(("loopcnt",)); scal[190].append(("loopcmp",))
    cap = {}
    for g in range(N):
        c = 2
        if g in ds: c -= 1
        if g in dma: c = 0
        if ((g + 1) % N) in dma: c -= 1
        if g in (190, 191): c = min(c, 0 if g == 191 else 1)
        if g in (cfg.bY + 1, cfg.bX + 1): c = max(0, c - 1)
        c -= max(0, len(scal[g]) - 1)
        cap[g] = max(c, 0)
    vec = {g: [] for g in range(N)}
    def elems(hf):
        out = []
        for ks in (2 * hf, 2 * hf + 1):
            for qt in range(3):
                for r in range(4):
                    out.append((ks, qt, r))
        return out
    order = [(cfg.c1 + 1 + k) % N for k in range(N)]
    total_cap = sum(cap[g] for g in order)
    need = 2 * (24 * 2 + 24 + 24 + 12 + 2)
    assert total_cap >= need, (total_cap, need)
    hf = 0
    st = None
    def fresh(hf):
        return dict(el=elems(hf), nf=0, ne=0, na=0, nc=0, chk=0, expgap={})
    st = fresh(0)
    used = 0; capseen = 0
    et_next = 0
    chkgap = {}
    for pos, g in enumerate(order):
        c = cap[g]
        capseen += c
        allowed = capseen * (need + 6) / total_cap + 2
        while c > 0 and hf < 2:
            e = st
            absg = cfg.c1 + 1 + pos
            def avail(i):
                ks, qt, r = e["el"][i]
                return absg >= 24 * ks + 8 * qt + 7 + 5
            if used >= allowed and not (pos > N - 12):
                break
            can_exp = (c == 2 and not vec[g] and e["ne"] < e["nf"] and e["ne"] - 2 * e["nc"] < NET and e["ne"] - e["na"] < NET)
            can_add = e["na"] < e["ne"] and e["expgap"][e["na"]] != g
            can_cvt = 2 * e["nc"] + 1 < e["ne"] and e["expgap"][2 * e["nc"] + 1] != g
            can_fma = e["nf"] < 24 and avail(e["nf"]) and e["nf"] - e["ne"] < 4
            if can_exp:
                vec[g].append(("exp", hf, e["ne"])); e["expgap"][e["ne"]] = g; e["ne"] += 1; c -= 2; used += 2
            elif can_fma and e["nf"] - e["ne"] < 2:
                vec[g].append(("fma", hf, e["nf"])); e["nf"] += 1; c -= 1; used += 1
            elif can_cvt:
                vec[g].append(("cvt", hf, e["nc"])); e["nc"] += 1; c -= 1; used += 1
            elif can_add:
                vec[g].append(("add", hf, e["na"])); e["na"] += 1; c -= 1; used += 1
            elif can_fma:
                vec[g].append(("fma", hf, e["nf"])); e["nf"] += 1; c -= 1; used += 1
            elif e["na"] == 24 and e["nc"] == 12 and e["chk"] == 0:
                vec[g].append(("max3", hf)); e["chk"] = 1; c -= 1; used += 1
            elif e["chk"] == 1:
                vec[g].append(("cmp", hf)); e["chk"] = 2; c -= 1; used += 1
                gb = (g + 1) % N
                scal[gb].append(("chkbr", hf)); chkgap[hf] = gb
                if len(scal[gb]) > 1: cap[gb] = max(0, cap[gb] - 1)
                hf += 1
                if hf < 2: st = fresh(hf)
                break
            else:
                break
    assert hf == 2, "SM did not fit"
    assert chkgap[1] <= 47, chkgap
    return dict(ds=ds, dma=dma, scal=scal, vec=vec, chk=chkgap, cap=cap)

def elem_of(hf, i):
    ks = 2 * hf + i // 12; qt = (i % 12) // 4; r = i % 4
    return ks, qt, r

class Emit:
    def __init__(self, cfg):
        self.cfg = cfg
        self.L = []
        self.dsq = []
        self.cov = 0
        self.tramps = []
        self.ntr = 0
    def o(self, s): self.L.append("    " + s)
    def lab(self, s): self.L.append(s + ":")
    def c(self, s): self.L.append("    ; " + s)

    def frag_tags(self, g, par):
        d = mfma_desc(g % 192)
        if d[0] == "QK":
            return [("K", d[1], d[3])]
        return [("V", d[1], d[3], 0), ("V", d[1], d[3], 1)]

    def need_wait(self, tags, now):
        idx = -1
        for i, (tg, gp) in enumerate(self.dsq):
            if tg in tags: idx = max(idx, i)
        if idx < self.cov: return None
        j = idx
        while j + 1 < len(self.dsq) and self.dsq[j + 1][1] <= now - self.cfg.lat: j += 1
        n = len(self.dsq) - 1 - j
        if n > 15:
            n = 15; j = len(self.dsq) - 1 - n
        self.cov = j + 1
        return n

    def body(self, S, par, qk=True, pv=True, sm_even=True, sm_odd_a=True, sm_odd_b=True,
             dmaA=True, dmaB=True, k0=True, init_m=False, loopctl=None, vmY=16, vmX=16, barX=True):
        cfg = self.cfg
        for g in range(192):
            d = mfma_desc(g)
            if d[0] == "QK" and qk:
                _, ks, qt, t = d
                cc = "0" if t == 0 else Sr(ks, qt)
                self.o(f"v_mfma_f32_16x16x32_bf16 {Sr(ks,qt)}, {Fr(8*(ks&1)+t)}, {Qr(qt,t)}, {cc}")
            if d[0] == "PV" and pv:
                _, dt, qt, kk = d
                self.o(f"v_mfma_f32_16x16x32_bf16 {Or(dt,qt)}, {Fr((2*dt+kk)%16)}, {Pr(par,kk,qt)}, {Or(dt,qt)}")
            nxt = g + 1
            nd = mfma_desc(nxt % 192)
            nxt_on = (qk if nd[0] == "QK" else pv) if nxt < 192 else k0
            sc = list(S["scal"][g])
            has_bwait = any(x[0] == "bwait" for x in sc)
            if nxt_on and not has_bwait:
                n = self.need_wait(self.frag_tags(nxt, par), g)
                if n is not None: self.o(f"s_waitcnt lgkmcnt({n})")
            for x in sc:
                if x[0] == "m0":
                    kind, n = x[1]
                    if kind == "DV" and dmaA:
                        r1, r0, gg = n >> 2, (n >> 1) & 1, n & 1
                        off = (par ^ 1) * SLOT + (8 * gg + 2 * (2 * r1 + r0)) * BLK - (4 * r0 + gg) * 512
                        self.o(f"s_add_u32 m0, {sVM}, {off}")
                    if kind == "DK" and dmaB:
                        off = KS[par ^ 1] + n * BLK - (n & 3) * 1024
                        self.o(f"s_add_u32 m0, {sKM}, {off}")
                elif x[0] == "soff":
                    kind, n = x[1]
                    inc = 4096 if n == 3 else 32768 - 4096
                    if kind == "DV" and dmaA: self.o(f"s_add_u32 {sVoff}, {sVoff}, {inc}")
                    if kind == "DK" and dmaB: self.o(f"s_add_u32 {sKoff}, {sKoff}, {inc}")
                elif x[0] == "bwait":
                    isY = (g == cfg.bY)
                    if isY or barX:
                        self.o(f"s_waitcnt vmcnt({vmY if isY else vmX}) lgkmcnt(0)")
                    else:
                        self.o("s_waitcnt lgkmcnt(0)")
                    self.dsq = []; self.cov = 0
                elif x[0] == "barrier":
                    if g == cfg.bY + 1 or barX: self.o("s_barrier")
                elif x[0] == "chkbr":
                    hf = x[1]
                    on = sm_even if hf == 0 else sm_odd_a
                    if on:
                        k = self.ntr; self.ntr += 1
                        self.o(f"s_cbranch_vccnz L_tr{k}")
                        self.lab(f"L_ret{k}")
                        self.tramps.append((k, hf, par))
                    if hf == 1 and init_m:
                        self.init_max()
                elif x[0] == "loopcnt":
                    if loopctl: self.o(f"s_sub_u32 {sCnt}, {sCnt}, 1")
                elif x[0] == "loopcmp":
                    if loopctl: self.o(f"s_cmp_eq_u32 {sCnt}, 0")
            if g in S["ds"]:
                x = S["ds"][g]
                if x[0] == "K" and qk:
                    _, ks, t = x
                    off = KS[par ^ 1] + (16 * (ks >> 1) + (ks & 1)) * BLK + t * 64
                    self.o(f"ds_read_b128 {Fr(8*(ks&1)+t)}, {vK} offset:{off}")
                    self.dsq.append((("K", ks, t), g))
                elif x[0] == "K0" and k0:
                    _, ks, t = x
                    off = KS[par] + t * 64
                    self.o(f"ds_read_b128 {Fr(t)}, {vK} offset:{off}")
                    self.dsq.append((("K", 0, t), g))
                elif x[0] == "V" and pv:
                    _, dt, kk, u = x
                    off = par * SLOT + 16 * kk * BLK + u * 512 + dt * 32
                    self.o(f"ds_read_b64_tr_b16 {Fh((2*dt+kk)%16, u)}, {vV} offset:{off}")
                    self.dsq.append((("V", dt, kk, u), g))
            if g in S["dma"]:
                kind, n = S["dma"][g]
                if not (qk and pv): self.o("s_nop 0")
                if kind == "DV" and dmaA:
                    r0, gg = (n >> 1) & 1, n & 1
                    self.o(f"buffer_load_dwordx4 {vDV}, {sV}, {sVoff} offen offset:{(4*r0+gg)*512} lds")
                if kind == "DK" and dmaB:
                    self.o(f"buffer_load_dwordx4 {vDK}, {sK}, {sKoff} offen offset:{(n&3)*1024} lds")
            for x in S["vec"][g]:
                hf = x[1]
                if hf == 0:
                    on = sm_even; pp = par ^ 1
                else:
                    first = g > S["chk"][1] + 4
                    on = sm_odd_b if first else sm_odd_a
                    pp = (par ^ 1) if first else par
                if not on: continue
                mf_on = (qk if d[0] == "QK" else pv)
                if x[0] == "fma":
                    ks, qt, r = elem_of(hf, x[2])
                    self.o(f"v_fma_f32 {Se(ks,qt,r)}, {Se(ks,qt,r)}, {sC}, {NM(qt)}")
                elif x[0] == "exp":
                    ks, qt, r = elem_of(hf, x[2])
                    self.o(f"v_exp_f32 v{ET0 + x[2] % NET}, {Se(ks,qt,r)}")
                    if not (qk and pv): self.o("s_nop 0")
                elif x[0] == "add":
                    ks, qt, r = elem_of(hf, x[2])
                    src = Lr(hf ^ 1, qt) if (x[2] < 12 and r == 0) else Lr(hf, qt)
                    self.o(f"v_add_f32 {Lr(hf,qt)}, {src}, v{ET0 + x[2] % NET}")
                elif x[0] == "cvt":
                    i = 2 * x[2]
                    ks, qt, r = elem_of(hf, i)
                    j = 2 * (ks & 1) + r // 2
                    self.o(f"v_cvt_pk_bf16_f32 {Pe(pp,hf,qt,j)}, v{ET0 + i % NET}, v{ET0 + (i+1) % NET}")
                elif x[0] == "max3":
                    self.o(f"v_max3_f32 {vCHK}, {Lr(hf,0)}, {Lr(hf,1)}, {Lr(hf,2)}")
                elif x[0] == "cmp":
                    self.o(f"v_cmp_lt_f32 vcc, {sThr}, {vCHK}")
                    if not (qk and pv): self.o("s_nop 4")
        self.dsq = [(tg, gp - 192) for tg, gp in self.dsq]

    def xlane(self, op, v, t):
        self.o(f"v_mov_b32 {t}, {v}")
        self.o("s_nop 1")
        self.o(f"v_permlane32_swap_b32 {v}, {t}")
        self.o("s_nop 1")
        self.o(f"{op} {v}, {v}, {t}")
        self.o(f"v_mov_b32 {t}, {v}")
        self.o("s_nop 1")
        self.o(f"v_permlane16_swap_b32 {v}, {t}")
        self.o("s_nop 1")
        self.o(f"{op} {v}, {v}, {t}")

    def init_max(self):
        self.c("initial reference max from the first 16 keys")
        for qt in range(3):
            t = f"v{T0+qt}"
            self.o(f"v_max3_f32 {t}, {Se(0,qt,0)}, {Se(0,qt,1)}, {Se(0,qt,2)}")
            self.o(f"v_max_f32 {t}, {t}, {Se(0,qt,3)}")
            self.xlane("v_max_f32", t, f"v{T0+4}")
            self.o(f"v_mul_f32 {NM(qt)}, {sC}, {t}")
            self.o(f"v_sub_f32 {NM(qt)}, 0, {NM(qt)}")

    def slow(self, hf, par):
        pcur = (par ^ 1) if hf == 0 else par
        pend = [(par, 0), (par, 1)] if hf == 0 else [(par, 0)]
        self.lab(f"L_slow_{hf}_{par}")
        self.o("s_nop 15")
        fr = [f"v{T0+qt}" for qt in range(3)]
        nr = [f"v{T0+4+qt}" for qt in range(3)]
        tt = f"v{T0+8}"; tu = f"v{T0+9}"
        for qt in range(3):
            xs = [Se(ks, qt, r) for ks in (2*hf, 2*hf+1) for r in range(4)]
            n = nr[qt]
            self.o(f"v_log_f32 {tt}, {Lr(hf^1,qt)}")
            self.o(f"v_max3_f32 {n}, {xs[0]}, {xs[1]}, {xs[2]}")
            self.o(f"v_max3_f32 {n}, {n}, {xs[3]}, {xs[4]}")
            self.o(f"v_max3_f32 {n}, {n}, {xs[5]}, {xs[6]}")
            self.o(f"v_max3_f32 {n}, {n}, {xs[7]}, {tt}")
            self.xlane("v_max_f32", n, tu)
            self.o(f"v_max_f32 {n}, 0, {n}")
            self.o(f"v_ceil_f32 {n}, {n}")
            self.o(f"v_sub_f32 {NM(qt)}, {NM(qt)}, {n}")
            self.o(f"v_min_f32 {tt}, 0x43800000, {n}")
            self.o(f"v_cvt_i32_f32 {tt}, {tt}")
            self.o(f"v_sub_u32 {tt}, 0, {tt}")
            self.o(f"v_ldexp_f32 {fr[qt]}, 1.0, {tt}")
        for dt in range(16):
            for qt in range(3):
                for r in range(4):
                    self.o(f"v_accvgpr_read_b32 v{T0+10+r}, {Oe(dt,qt,r)}")
                for r in range(4):
                    self.o(f"v_mul_f32 v{T0+10+r}, v{T0+10+r}, {fr[qt]}")
                for r in range(4):
                    self.o(f"v_accvgpr_write_b32 {Oe(dt,qt,r)}, v{T0+10+r}")
        for (pp, kk) in pend:
            for qt in range(3):
                for j in range(4):
                    p = Pe(pp, kk, qt, j)
                    self.o(f"v_lshlrev_b32 {tt}, 16, {p}")
                    self.o(f"v_and_b32 {tu}, 0xffff0000, {p}")
                    self.o(f"v_mul_f32 {tt}, {tt}, {fr[qt]}")
                    self.o(f"v_mul_f32 {tu}, {tu}, {fr[qt]}")
                    self.o(f"v_cvt_pk_bf16_f32 {p}, {tt}, {tu}")
        for qt in range(3):
            self.o(f"v_mul_f32 {Lr(hf,qt)}, {Lr(hf^1,qt)}, {fr[qt]}")
            for ks in (2*hf, 2*hf+1):
                for r in range(4):
                    self.o(f"v_sub_f32 v{T0+10+r}, {Se(ks,qt,r)}, {nr[qt]}")
                for r in range(4):
                    self.o(f"v_exp_f32 v{T0+10+r}, v{T0+10+r}")
                self.o("s_nop 0")
                for r in range(4):
                    self.o(f"v_add_f32 {Lr(hf,qt)}, {Lr(hf,qt)}, v{T0+10+r}")
                j = 2 * (ks & 1)
                self.o(f"v_cvt_pk_bf16_f32 {Pe(pcur,hf,qt,j)}, v{T0+10}, v{T0+11}")
                self.o(f"v_cvt_pk_bf16_f32 {Pe(pcur,hf,qt,j+1)}, v{T0+12}, v{T0+13}")
        self.o("s_nop 3")
        self.o(f"s_setpc_b64 {sRet}")

def gen(cfg):
    S = build_schedule(cfg)
    E = Emit(cfg)
    o = E.o
    E.L.append(f"; @launch grid=(256,1,1) block=(256,1,1) lds={LDS_BYTES}")
    E.L.append('.amdgcn_target "amdgcn-amd-amdhsa--gfx950"')
    E.L.append(".text")
    E.L.append(f".globl {NAME}")
    E.L.append(".p2align 8")
    E.L.append(f".type {NAME},@function")
    E.lab(NAME)
    o("s_cmp_ge_u32 s2, 256")
    o("s_cbranch_scc1 L_end")
    o("s_load_dwordx4 s[32:35], s[0:1], 0")
    o("s_load_dwordx4 s[36:39], s[0:1], 16")
    if cfg.stamp:
        o("s_load_dwordx2 s[60:61], s[0:1], 40")
        o("s_memtime s[64:65]")
        o("s_memrealtime s[66:67]")
    o("s_and_b32 s40, s2, 7")
    o("s_lshr_b32 s41, s2, 4")
    o("s_lshl_b32 s41, s41, 3")
    o("s_or_b32 s40, s40, s41")
    o("s_lshr_b32 s41, s2, 3")
    o("s_and_b32 s41, s41, 1")
    o("s_lshl_b32 s42, s40, 20")
    o("s_lshl_b32 s43, s40, 1")
    o("s_add_u32 s43, s43, s41")
    o("s_mul_i32 s43, s43, 98304")
    o("v_lshrrev_b32 v250, 6, v0")
    o("v_and_b32 v251, 63, v0")
    o("v_readfirstlane_b32 s20, v250")
    o("v_and_b32 v252, 15, v251")
    o("v_lshrrev_b32 v253, 4, v251")
    o(f"v_lshlrev_b32 {vDK}, 4, v251")
    o("v_lshrrev_b32 v254, 5, v251")
    o("v_lshlrev_b32 v254, 10, v254")
    o("v_and_b32 v255, 31, v251")
    o("v_lshlrev_b32 v255, 4, v255")
    o(f"v_add_u32 {vDV}, v254, v255")
    o(f"s_mul_i32 {sKM}, s20, {8*BLK}")
    o("s_lshr_b32 s44, s20, 1")
    o("s_lshl_b32 s44, s44, 4")
    o("s_and_b32 s45, s20, 1")
    o("s_add_u32 s44, s44, s45")
    o(f"s_mul_i32 s44, s44, {BLK}")
    o(f"s_add_u32 {sVM}, s44, {VS[0]}")
    o(f"s_lshl_b32 {sKoff}, s20, 13")
    o(f"s_mov_b32 {sVoff}, {sKoff}")
    o("v_mul_u32_u24 v254, 48, v250")
    o("v_add_u32 v254, v254, v252")
    o("v_lshlrev_b32 v254, 9, v254")
    o("v_lshlrev_b32 v255, 4, v253")
    o("v_add_u32 v249, v254, v255")
    o("s_waitcnt lgkmcnt(0)")
    o("s_add_u32 s4, s34, s42"); o("s_addc_u32 s5, s35, 0"); o("s_mov_b32 s6, 0x100000"); o("s_mov_b32 s7, 0x20000")
    o("s_add_u32 s8, s36, s42"); o("s_addc_u32 s9, s37, 0"); o("s_mov_b32 s10, 0x100000"); o("s_mov_b32 s11, 0x20000")
    o("s_add_u32 s12, s32, s43"); o("s_addc_u32 s13, s33, 0"); o("s_mov_b32 s14, 98304"); o("s_mov_b32 s15, 0x20000")
    o("s_add_u32 s16, s38, s43"); o("s_addc_u32 s17, s39, 0"); o("s_mov_b32 s18, 98304"); o("s_mov_b32 s19, 0x20000")
    def dmaK(slot):
        for n in range(8):
            o(f"s_add_u32 m0, {sKM}, {KS[slot] + n*BLK - (n&3)*1024}")
            o("s_nop 0")
            o(f"buffer_load_dwordx4 {vDK}, {sK}, {sKoff} offen offset:{(n&3)*1024} lds")
            if n == 3: o(f"s_add_u32 {sKoff}, {sKoff}, 4096")
            if n == 7: o(f"s_add_u32 {sKoff}, {sKoff}, {32768-4096}")
    def dmaV(slot):
        for n in range(8):
            r1, r0, gg = n >> 2, (n >> 1) & 1, n & 1
            o(f"s_add_u32 m0, {sVM}, {slot*SLOT + (8*gg + 2*(2*r1+r0))*BLK - (4*r0+gg)*512}")
            o("s_nop 0")
            o(f"buffer_load_dwordx4 {vDV}, {sV}, {sVoff} offen offset:{(4*r0+gg)*512} lds")
            if n == 3: o(f"s_add_u32 {sVoff}, {sVoff}, 4096")
            if n == 7: o(f"s_add_u32 {sVoff}, {sVoff}, {32768-4096}")
    dmaK(0)
    if cfg.prefetch_code:
        o("s_getpc_b64 s[46:47]")
        E.lab("L_pc")
        o("s_add_u32 s46, s46, L_pro - L_pc")
        o("s_addc_u32 s47, s47, 0")
        o("v_lshlrev_b32 v248, 7, v0")
        o("v_min_u32 v248, L_codeend - L_pro - 4, v248")
        o("global_load_dword v247, v248, s[46:47]")
    o("v_and_b32 v254, 3, v252")
    o("v_lshrrev_b32 v255, 3, v252")
    o("v_lshlrev_b32 v255, 2, v255")
    o("v_or_b32 v254, v254, v255")
    o(f"v_mul_u32_u24 v254, {2*BLK}, v254")
    o("v_lshrrev_b32 v255, 2, v252")
    o("v_and_b32 v255, 1, v255")
    o("v_lshlrev_b32 v255, 9, v255")
    o("v_add_u32 v254, v254, v255")
    o("v_lshlrev_b32 v255, 4, v253")
    o(f"v_add_u32 {vK}, v254, v255")
    o("v_and_b32 v254, 1, v253")
    o("v_lshlrev_b32 v254, 3, v254")
    o("v_lshrrev_b32 v255, 2, v252")
    o("v_lshlrev_b32 v255, 1, v255")
    o("v_add_u32 v254, v254, v255")
    o("v_lshrrev_b32 v255, 1, v253")
    o("v_add_u32 v254, v254, v255")
    o(f"v_mul_u32_u24 v254, {BLK}, v254")
    o("v_and_b32 v255, 3, v252")
    o("v_lshlrev_b32 v255, 3, v255")
    o("v_add_u32 v254, v254, v255")
    o(f"v_add_u32 {vV}, {VS[0]}, v254")
    o("s_mov_b32 s48, 8192"); o("s_mov_b32 s49, 16384")
    for qt in range(3):
        so = ["0", "s48", "s49"][qt]
        for t in range(8):
            o(f"buffer_load_dwordx4 {Qr(qt,t)}, v249, {sQ}, {so} offen offset:{t*64}")
    dmaK(1)
    dmaV(0)
    o(f"s_mov_b32 {sC}, {hex(f2u(math.log2(math.e) / 16.0))}")
    o(f"s_mov_b32 {sThr}, {hex(f2u(cfg.thr))}")
    o(f"s_mov_b32 {sCnt}, 16")
    for i in range(192):
        o(f"v_accvgpr_write_b32 a{i}, 0")
    for qt in range(3):
        o(f"v_mov_b32 {Lr(1,qt)}, 0")
    for i in range(48):
        o(f"v_mov_b32 v{P0+i}, 0")
    o("s_waitcnt vmcnt(16)")
    o("s_barrier")
    if cfg.stamp:
        o("s_memtime s[68:69]")
        o("s_waitcnt lgkmcnt(0)")
    E.lab("L_pro")
    for t in range(8):
        o(f"ds_read_b128 {Fr(t)}, {vK} offset:{KS[0] + t*64}")
    o("s_waitcnt lgkmcnt(0)")
    E.dsq = []; E.cov = 0
    E.body(S, 1, qk=True, pv=False, sm_even=True, sm_odd_a=False, sm_odd_b=True, dmaA=False, dmaB=True,
           init_m=True, vmY=63, vmX=16)
    st = (list(E.dsq), E.cov)
    if cfg.stamp:
        o("s_memtime s[70:71]")
    E.L.append(".p2align 6")
    E.lab("L_loop")
    E.body(S, 0, loopctl=True)
    assert (list(E.dsq), E.cov) == st, (E.dsq, E.cov, st)
    o("s_cbranch_scc1 L_final")
    E.body(S, 1)
    assert (list(E.dsq), E.cov) == st
    o("s_branch L_loop")
    E.lab("L_final")
    if cfg.stamp:
        o("s_memtime s[72:73]")
    E.body(S, 1, qk=False, pv=True, sm_even=False, sm_odd_a=True, sm_odd_b=False, dmaA=False, dmaB=False,
           k0=False, vmY=0, barX=False)
    if cfg.stamp:
        o("s_memtime s[74:75]")
    for qt in range(3):
        E.xlane("v_add_f32", Lr(1, qt), f"v{T0}")
        o(f"v_rcp_f32 {Lr(0,qt)}, {Lr(1,qt)}")
    o("v_and_b32 v254, 0xfffffe00, v249")
    o("v_and_b32 v255, 1, v253")
    o("v_lshlrev_b32 v255, 5, v255")
    o("v_add_u32 v254, v254, v255")
    o("v_lshrrev_b32 v255, 1, v253")
    o("v_lshlrev_b32 v255, 4, v255")
    o("v_add_u32 v249, v254, v255")
    o("s_nop 7")
    k = 0
    for dp in range(8):
        for qt in range(3):
            b = 96 + (k % 4) * 12; k += 1
            for h in range(2):
                for r in range(4):
                    o(f"v_accvgpr_read_b32 v{b+4*h+r}, {Oe(2*dp+h,qt,r)}")
            for i in range(8):
                o(f"v_mul_f32 v{b+i}, v{b+i}, {Lr(0,qt)}")
            o(f"v_cvt_pk_bf16_f32 v{b+8}, v{b}, v{b+1}")
            o(f"v_cvt_pk_bf16_f32 v{b+9}, v{b+2}, v{b+3}")
            o(f"v_cvt_pk_bf16_f32 v{b+10}, v{b+4}, v{b+5}")
            o(f"v_cvt_pk_bf16_f32 v{b+11}, v{b+6}, v{b+7}")
            o("s_nop 1")
            o(f"v_permlane16_swap_b32 v{b+8}, v{b+10}")
            o(f"v_permlane16_swap_b32 v{b+9}, v{b+11}")
            so = ["0", "s48", "s49"][qt]
            o(f"buffer_store_dwordx4 v[{b+8}:{b+11}], v249, {sO}, {so} offen offset:{dp*64}")
    if cfg.stamp:
        o("s_waitcnt vmcnt(0)")
        o("s_memtime s[76:77]")
        o("s_memrealtime s[78:79]")
        o("s_waitcnt lgkmcnt(0)")
        o("s_mov_b32 s80, s60"); o("s_mov_b32 s81, s61"); o("s_mov_b32 s82, 0x100000"); o("s_mov_b32 s83, 0x20000")
        regs = [64, 68, 70, 72, 74, 76, 66, 78]
        for i, r in enumerate(regs):
            o(f"v_mov_b32 v{96+i}, s{r}")
        o("s_lshl_b32 s84, s2, 2"); o("s_add_u32 s84, s84, s20"); o("s_lshl_b32 s84, s84, 5")
        o("v_mov_b32 v104, 0")
        o("buffer_store_dwordx4 v[96:99], v104, s[80:83], s84 offen")
        o("buffer_store_dwordx4 v[100:103], v104, s[80:83], s84 offen offset:16")
    E.lab("L_end")
    o("s_endpgm")
    E.lab("L_codeend")
    for k, hf, par in E.tramps:
        E.lab(f"L_tr{k}")
        o(f"s_call_b64 {sRet}, L_slow_{hf}_{par}")
        o(f"s_branch L_ret{k}")
    for hf in range(2):
        for par in range(2):
            E.slow(hf, par)
    o("s_endpgm")
    E.L.append('.section .rodata,"a"')
    E.L.append(".p2align 6")
    E.L.append(f".amdhsa_kernel {NAME}")
    E.L += ["  .amdhsa_next_free_vgpr 512", "  .amdhsa_next_free_sgpr 96", "  .amdhsa_accum_offset 256",
            "  .amdhsa_group_segment_fixed_size 0", "  .amdhsa_kernarg_size 48", "  .amdhsa_user_sgpr_count 2",
            "  .amdhsa_user_sgpr_kernarg_segment_ptr 1", "  .amdhsa_system_sgpr_workgroup_id_x 1",
            ".end_amdhsa_kernel"]
    return "\n".join(E.L) + "\n", S

def show(S):
    for g in range(192):
        print(g, mfma_desc(g), "cap", S["cap"][g], "| sc", [x[0] for x in S["scal"][g]], "| ds", S["ds"].get(g), "| dma", S["dma"].get(g), "|", S["vec"][g])
    print("chk", S["chk"])

HEADER = """; Kernarg layout for this problem (48 bytes, ptrs only, base s[0:1]):
; Generated by gen/gen.py (hand-written generator): flash-attention forward, 16x16x32 bf16 MFMA,
; one workgroup = 192 queries of one head, K/V streamed through LDS by DMA.
"""

if __name__ == "__main__":
    cfg = Cfg()
    out = "standalone__mha_softmax__near_ridge.s"
    for a in sys.argv[1:]:
        if a == "show": continue
        if a.startswith("out="): out = a[4:]; continue
        k, v = a.split("=")
        setattr(cfg, k, eval(v))
    txt, S = gen(cfg)
    open(out, "w").write(HEADER + txt)
    if "show" in sys.argv: show(S)
```

```python
import sys, math, struct

NAME = "standalone__mha_softmax__near_ridge_kernel"

def f2u(x):
    return struct.unpack("<I", struct.pack("<f", x))[0]

class Cfg:
    bY = 67
    bX = 173
    lat = 7
    dmaA = [180, 186, 3, 11, 19, 27, 35, 43]
    dmaB = [74, 83, 92, 101, 110, 119, 128, 137]
    ncopy = 2
    smend = 186
    snake = True
    stamp = False
    pstamp = False
    istamp = False
    pfat = []
    pfV = (3, 11)
    pfK = (2, 11)
    pfsh = 1
    pfgap = 152
    pfpol = ''
    prefetch_code = True
    stag = 3
    stagpol = 1
    gb = 14
    gs = 4
    dma0 = [[1,5,9,13,18,23,29,35],[43,53,63,74,80,86,92,98],[107,116,125,134,143,152,161,167]]
    v0split = 8
    pretouch = ''
    thr = 2.0**20
    abl = ''
    kvpol = 'nt'
    qpol = 'nt'
    opol = 'sc1 nt'
    epi_ratio = 3
    flead = 60
    fast0 = 24
    dma30 = [1, 5, 9, 13, 17, 21, 25, 29]
    kg = [[2,4,6,8,10,12,14,16],[26,28,30,32,34,36,38,40],[46,48,50,52,54,56,58,60]]
    evenpace = False
    dma31 = [74, 83, 92, 101, 121, 125, 129, 133]
    stgap = 3
    bZ = 99

BLK = 1040
SLOT = 32 * BLK
KS = [0, SLOT]
VS = [2 * SLOT, 3 * SLOT]
LDS_BYTES = 4 * SLOT
OROW = 144
OGRP = 48 * OROW
OWAVE = OGRP
OBASE = KS[1]

def Qb(qt, t): return ("a", 128 + 32 * qt + 4 * t) if qt < 2 else ("v", 64 + 4 * t)
def Qr(qt, t): k, b = Qb(qt, t); return f"{k}[{b}:{b+3}]"
S0 = 96
def Sr(ks, qt): b = S0 + 12 * ks + 4 * qt; return f"v[{b}:{b+3}]"
def Se(ks, qt, r): return f"v{S0 + 12 * ks + 4 * qt + r}"
P0 = 144
def Pr(par, kk, qt): b = P0 + 24 * par + 12 * kk + 4 * qt; return f"v[{b}:{b+3}]"
def Pe(par, kk, qt, j): return f"v{P0 + 24 * par + 12 * kk + 4 * qt + j}"
QRAW = 168
ET0 = 192; NET = 8
def Lr(par, qt): return f"v{200 + 3 * par + qt}"
vCHK, vPF = "v206", "v253"
vV2 = "v207"
PX = 228
def Pb(buf): return PX if buf == 2 else P0 + 24 * buf
def Pr3(buf, kk, qt): b = Pb(buf) + 12 * kk + 4 * qt; return f"v[{b}:{b+3}]"
def Pe3(buf, kk, qt, j): return f"v{Pb(buf) + 12 * kk + 4 * qt + j}"
def NMr(qt): return f"v[{208+4*qt}:{211+4*qt}]"
def NMe(qt, r): return f"v{208+4*qt+r}"
vK, vV, vDK, vDV = "v220", "v221", "v222", "v223"
vOW, vOR, vOG, vOG2 = "v224", "v225", "v226", "v227"
T0 = 228
def Ob(dt, qt):
    i = dt * 3 + qt
    return ("v", 4 * i) if i < 16 else ("a", 4 * (i - 16))
def Or(dt, qt): k, b = Ob(dt, qt); return f"{k}[{b}:{b+3}]"
def Oe(dt, qt, r): k, b = Ob(dt, qt); return f"{k}{b+r}"
F0 = 192
def Fr(slot): b = F0 + 4 * slot; return f"a[{b}:{b+3}]"
def Fh(slot, u): b = F0 + 4 * slot + 2 * u; return f"a[{b}:{b+1}]"

sK, sV, sQ, sO = "s[4:7]", "s[8:11]", "s[12:15]", "s[16:19]"
sW, sKM, sVM, sKoff, sVoff, sC, sThr, sCnt, sThrC = "s20", "s21", "s22", "s23", "s24", "s26", "s27", "s28", "s29"
sRet = "s[30:31]"
POL = {}
SNAKE = [True]

def mfma_desc(g):
    if g < 96:
        ks, rem = divmod(g, 24); c, p = divmod(rem, 8)
        if not SNAKE[0]: return ("QK", ks, c, p, p == 0)
        qt = c if ks % 2 == 0 else 2 - c
        fwd = (c % 2 == 0) == (ks % 2 == 0)
        return ("QK", ks, qt, p if fwd else 7 - p, p == 0)
    g -= 96
    dt, rem = divmod(g, 6); c, p = divmod(rem, 2)
    if not SNAKE[0]: return ("PV", dt, c, p)
    qt = c if dt % 2 == 0 else 2 - c
    fwd = (c % 2 == 0) == (dt % 2 == 0)
    return ("PV", dt, qt, p if fwd else 1 - p)
def kpos(ks, t):
    return t if (ks % 2 == 0 or not SNAKE[0]) else 7 - t
def kslot(ks, t): return 8 * (ks & 1) + kpos(ks, t)
def vpos(dt, kk): return kk if (dt % 2 == 0 or not SNAKE[0]) else 1 - kk
def vslot(dt, kk): return (2 * dt + vpos(dt, kk)) % 16
def chains():
    return [(mfma_desc(8 * c)[1], mfma_desc(8 * c)[2]) for c in range(12)]
def elem_of(i):
    ks, qt = chains()[i // 4]
    return ks, qt, i % 4

def build_schedule(cfg, shift=0, first=False):
    N = 192
    ds = {}
    for p in range(8):
        ds[cfg.kg[0][p]] = ("K", 1, kpos(1, p))
        ds[cfg.kg[1][p]] = ("K", 2, p)
        ds[cfg.kg[2][p]] = ("K", 3, kpos(3, p))
        ds[175 + 2 * p] = ("K0", 0, p)
    for n in range(64):
        dt = n >> 2
        ds[72 + (3 * n) // 2] = ("V", dt, vpos(dt, (n >> 1) & 1), n & 1)
    dma = {}
    def place(g, d):
        while g in ds or g in dma or (g - 1) in dma or (g + 1) in dma: g += 1
        dma[g] = d
    if first:
        bar = (cfg.bY, cfg.bY + 1, cfg.bY + 2)
        for n, g in enumerate(cfg.dma0[0]): place(g, ("DK", n, 0))
        for n, g in enumerate(cfg.dma0[1]): place(g, ("DV", n, 1))
        for n, g in enumerate(cfg.dma0[2]): place(g, ("DK", n, 1))
        for n, g in enumerate(cfg.dmaA):
            if g > 96: place(g, ("DV", n, 0))
        order = [dma[g][::2] for g in sorted(dma)]
        assert order == sorted(order, key=lambda x: [("DK", 0), ("DV", 1), ("DK", 1), ("DV", 0)].index(x))
        assert not any(g in bar for g in dma)
        assert all(cfg.bY + 1 < g < cfg.bX - 1 for g, d in dma.items() if d[::2] == ("DK", 1))
    else:
        for n, g in enumerate(cfg.dmaA): place(g + shift, ("DV", n))
        for n, g in enumerate(cfg.dmaB): place(g + shift, ("DK", n))
        if cfg.pfgap: place(cfg.pfgap + shift, ("PF", 0))
        assert all(g < cfg.bY or cfg.bX + 1 < g < 190 for g, d in dma.items() if d[0] == "DV")
        assert all(cfg.bY + 1 < g < cfg.bX for g, d in dma.items() if d[0] == "DK")
    scal = {g: [] for g in range(N)}
    for g, d in dma.items():
        assert g >= 1
        if d[0] == "PF":
            scal[g + 1].append(("pfoff",)); scal[g + 2].append(("pfclamp",)); continue
        scal[g - 1].append(("m0", d))
        if d[1] in (3, 7):
            scal[g + 1].append(("soff", d))
    scal[cfg.bY].append(("bwait",)); scal[cfg.bY + 1].append(("barrier",))
    scal[cfg.bX].append(("bwait",)); scal[cfg.bX + 1].append(("barrier",))
    if not first:
        scal[168].append(("loopcnt",)); scal[169].append(("loopcmp",)); scal[170].append(("loopsel",))
    cap = {}
    for g in range(N):
        c = 2
        if g in ds: c -= 1
        if g in dma: c = 0
        if (g + 1) in dma: c -= 1
        if g in (190, 191, cfg.bY, cfg.bY + 1, cfg.bX, cfg.bX + 1): c = 0
        c -= max(0, len(scal[g]) - 1)
        cap[g] = max(c, 0)
    vec = {g: [] for g in range(N)}
    g0 = 12
    total_cap = sum(cap[g] for g in range(g0, cfg.smend + 1))
    need = 48 * 2 + 48 + 24 + 2
    assert total_cap >= need, (total_cap, need)
    e = dict(ne=0, na=0, nc=0, chk=0, expgap={})
    used = 0; capseen = 0
    for g in range(g0, 190):
        c = cap[g]
        capseen += c
        allowed = capseen * (need + 4) / total_cap + 2
        if first: allowed = 1000
        if cfg.evenpace: allowed = (g - g0 + 1) * (need + 4) / (cfg.smend - g0) + 2
        while c > 0 and e["chk"] < 2:
            if used >= allowed: break
            avail = e["ne"] < 48 and g >= 8 * (e["ne"] // 4) + 7 + 5
            can_exp = (c == 2 and not vec[g] and avail and e["ne"] - 2 * e["nc"] < NET and e["ne"] - e["na"] < NET)
            can_add = e["na"] < e["ne"] and e["expgap"][e["na"]] != g
            can_cvt = 2 * e["nc"] + 1 < e["ne"] and e["expgap"][2 * e["nc"] + 1] != g
            if can_exp:
                vec[g].append(("exp", e["ne"])); e["expgap"][e["ne"]] = g; e["ne"] += 1; c -= 2; used += 2
            elif can_add and (e["na"] <= 2 * e["nc"] or not can_cvt):
                vec[g].append(("add", e["na"])); e["na"] += 1; c -= 1; used += 1
            elif can_cvt:
                vec[g].append(("cvt", e["nc"])); e["nc"] += 1; c -= 1; used += 1
            elif e["na"] == 48 and e["nc"] == 24 and e["chk"] == 0:
                vec[g].append(("max3",)); e["chk"] = 1; c -= 1; used += 1
                break
            elif e["chk"] == 1:
                assert g > 171 or first
                vec[g].append(("cmp",)); e["chk"] = 2; c -= 1; used += 1
            else:
                break
    assert e["chk"] == 2, "SM did not fit"
    return dict(ds=ds, dma=dma, scal=scal, vec=vec, cap=cap)

def verify_frags(S, cfg):
    pool = {}
    for rep in range(3):
        for g in range(192):
            d = mfma_desc(g)
            if rep > 0:
                if d[0] == "QK":
                    sl = kslot(d[1], d[3]); want = [("K", d[1], d[3], rep)] * 2
                else:
                    sl = vslot(d[1], d[3]); want = [("V", d[1], d[3], 0, rep), ("V", d[1], d[3], 1, rep)]
                for u in range(2):
                    tag, at = pool[(sl, u)]
                    assert tag == want[u], (g, d, tag, want[u])
                    assert rep * 192 + g - at >= 6, (g, d)
            if g in S["ds"]:
                x = S["ds"][g]; now = rep * 192 + g
                if x[0] == "K":
                    assert g < cfg.bY - 4
                    for u in range(2): pool[(kslot(x[1], x[2]), u)] = (("K", x[1], x[2], rep), now)
                elif x[0] == "K0":
                    assert g > cfg.bX
                    for u in range(2): pool[(kslot(0, x[2]), u)] = (("K", 0, x[2], rep + 1), now)
                else:
                    assert cfg.bY < g < cfg.bX - 4
                    pool[(vslot(x[1], x[2]), x[3])] = (("V", x[1], x[2], x[3], rep), now)

def m0K(slot, n): return KS[slot] + n * BLK - (n & 3) * 1024
def m0V(slot, n):
    r1, r0, gg = n >> 2, (n >> 1) & 1, n & 1
    return slot * SLOT + (8 * gg + 2 * (2 * r1 + r0)) * BLK - (4 * r0 + gg) * 512
def dmaK_ins(n): return f"buffer_load_dwordx4 {vDK}, {sK}, {sKoff} offen offset:{(n&3)*1024}{POL['kv']} lds"
def dmaV_ins(n):
    r0, gg = (n >> 1) & 1, n & 1
    return f"buffer_load_dwordx4 {vDV}, {sV}, {sVoff} offen offset:{(4*r0+gg)*512}{POL['kv']} lds"

def pf_ins(cfg, par):
    srd, off = (sQ, "s59") if par == 0 else ("s[44:47]", "s51")
    return f"buffer_load_dword {vPF}, v254, {srd}, {off} offen" + ((' ' + cfg.pfpol) if cfg.pfpol else '')

class Emit:
    def __init__(self, cfg):
        self.cfg = cfg
        self.L = []
        self.dsq = []
        self.cov = 0
        self.inloop = False
    def o(self, s):
        if getattr(self, 'infinal', False) and self.cfg.abl:
            a = self.cfg.abl
            if 'S' in a and s.startswith("buffer_store"): return
            if '0' in a and s.startswith("buffer_store") and "offset:0 " in s: return
            if 'W' in a and s.startswith("ds_write"): return
            if 'R' in a and s.startswith("ds_read_b128 v"): return
            if 'A' in a and s.startswith("v_accvgpr_read"): return
            if 'M' in a and s.startswith("v_mul_f32"): return
        if self.inloop and self.cfg.abl:
            a = self.cfg.abl
            if 'b' in a and s.startswith("s_barrier"): return
            if 'd' in a and s.startswith("buffer_load"): return
            if 'r' in a and s.startswith("ds_read"): return
        self.L.append("    " + s)
    def lab(self, s): self.L.append(s + ":")

    def frag_tags(self, g):
        d = mfma_desc(g % 192)
        if d[0] == "QK":
            return [("K", d[1], d[3])]
        return [("V", d[1], d[3], 0), ("V", d[1], d[3], 1)]

    def need_wait(self, tags, now):
        idx = -1
        for i, (tg, gp) in enumerate(self.dsq):
            if tg in tags: idx = max(idx, i)
        if idx < self.cov: return None
        j = idx
        while j + 1 < len(self.dsq) and self.dsq[j + 1][1] <= now - self.cfg.lat: j += 1
        n = len(self.dsq) - 1 - j
        if n > 15:
            n = 15; j = len(self.dsq) - 1 - n
        self.cov = j + 1
        return n

    def mfma(self, g, par):
        d = mfma_desc(g)
        if d[0] == "QK":
            _, ks, qt, t, first = d
            cc = NMr(qt) if first else Sr(ks, qt)
            self.o(f"v_mfma_f32_16x16x32_bf16 {Sr(ks,qt)}, {Fr(kslot(ks,t))}, {Qr(qt,t)}, {cc}")
        else:
            _, dt, qt, kk = d
            if '4' in self.cfg.abl and self.inloop:
                dp, rem = divmod(g - 96, 12); c, p = divmod(rem, 4)
                qt = c if dp % 2 == 0 else 2 - c
                if (c % 2 == 0) != (dp % 2 == 0): p = 3 - p
                acc = Or(dp + 8 * par, qt)
                self.o(f"v_mfma_f32_16x16x32_bf16 {acc}, {Fr((4 * dp + p) % 16)}, {Pr(p >> 1, p & 1, qt)}, {acc}")
                return
            self.o(f"v_mfma_f32_16x16x32_bf16 {Or(dt,qt)}, {Fr(vslot(dt,kk))}, {Pr(par,kk,qt)}, {Or(dt,qt)}")

    def dsop(self, x, g, par):
        if x[0] == "K":
            _, ks, t = x
            off = KS[par ^ 1] + (16 * (ks >> 1) + (ks & 1)) * BLK + t * 64
            self.o(f"ds_read_b128 {Fr(kslot(ks,t))}, {vK} offset:{off}")
            self.dsq.append((("K", ks, t), g))
        elif x[0] == "K0":
            _, ks, t = x
            self.o(f"ds_read_b128 {Fr(kslot(0,t))}, {vK} offset:{KS[par] + t * 64}")
            self.dsq.append((("K", 0, t), g))
        else:
            _, dt, kk, u = x
            off = par * SLOT + 16 * kk * BLK + u * 512 + dt * 32
            self.o(f"ds_read_b64_tr_b16 {Fh(vslot(dt,kk), u)}, {vV} offset:{off}")
            self.dsq.append((("V", dt, kk, u), g))

    def smop(self, x, par, thr, pbuf=None):
        if pbuf is None: pbuf = par ^ 1
        if x[0] == "exp":
            ks, qt, r = elem_of(x[1])
            self.o(f"v_exp_f32 v{ET0 + x[1] % NET}, {Se(ks,qt,r)}")
        elif x[0] == "add":
            ks, qt, r = elem_of(x[1])
            src = Lr(par ^ 1, qt) if (ks == 0 and r == 0) else Lr(par, qt)
            self.o(f"v_add_f32 {Lr(par,qt)}, {src}, v{ET0 + x[1] % NET}")
        elif x[0] == "cvt":
            i = 2 * x[1]
            ks, qt, r = elem_of(i)
            self.o(f"v_cvt_pk_bf16_f32 {Pe3(pbuf, ks>>1, qt, 2*(ks&1) + r//2)}, v{ET0 + i % NET}, v{ET0 + (i+1) % NET}")
        elif x[0] == "max3":
            self.o(f"v_max3_f32 {vCHK}, {Lr(par,0)}, {Lr(par,1)}, {Lr(par,2)}")
        elif x[0] == "cmp":
            self.o(f"v_cmp_{'nge' if par == 0 else 'lt'}_f32 vcc, {thr}, {vCHK}")

    def body(self, S, par, first=False):
        for g in range(192):
            if first and g >= 96 and g % 2 == 0:
                _, dt, qt, kk = mfma_desc(g)
                self.o(f"v_mfma_f32_16x16x32_bf16 {Or(dt,qt)}, {Fr(vslot(dt,kk))}, {Pr(par,kk,qt)}, 0")
            else: self.mfma(g, par)
            sc = list(S["scal"][g])
            if not any(x[0] == "bwait" for x in sc):
                n = self.need_wait(self.frag_tags(g + 1), g)
                if n is not None: self.o(f"s_waitcnt lgkmcnt({n})")
                if g == 190:
                    n = self.need_wait(self.frag_tags(g + 2), g)
                    if n is not None: self.o(f"s_waitcnt lgkmcnt({n})")
            for x in sc:
                if x[0] == "m0":
                    kind, n = x[1][:2]
                    if kind == "DV": self.o(f"s_add_u32 m0, {sVM}, {m0V(x[1][2] if first else par if g > 96 else par ^ 1, n)}")
                    else: self.o(f"s_add_u32 m0, {sKM}, {m0K(x[1][2] if first else par ^ 1, n)}")
                elif x[0] == "soff":
                    kind, n = x[1][:2]
                    inc = 4096 if n == 3 else 32768 - 4096
                    r = sVoff if kind == "DV" else sKoff
                    self.o(f"s_add_u32 {r}, {r}, {inc}")
                elif x[0] == "pfoff":
                    r = "s59" if par == 0 else "s51"
                    self.o(f"s_sub_u32 {r}, {r}, {8192 << self.cfg.pfsh}")
                elif x[0] == "pfclamp":
                    r = "s59" if par == 0 else "s51"
                    assert len(sc) == 1 and len(S["scal"][g - 1]) == 1
                    self.o(f"s_cselect_b32 {r}, 0x40000000, {r}")
                elif x[0] == "bwait":
                    nv = sum(1 for gg in S["dma"] if gg < g) if (first and g == self.cfg.bY) else 16
                    self.o(f"s_waitcnt vmcnt({nv}) lgkmcnt(0)")
                    self.dsq = []; self.cov = 0
                elif x[0] == "barrier":
                    self.o("s_barrier")
                elif x[0] == "loopcnt":
                    if par == 0: self.o(f"s_sub_u32 {sCnt}, {sCnt}, 1")
                elif x[0] == "loopcmp":
                    if par == 0: self.o(f"s_bitcmp1_b32 s57, {sCnt}")
                elif x[0] == "loopsel":
                    if par == 0: self.o(f"s_cselect_b32 {sThrC}, -1.0, {'-1.0' if self.cfg.istamp else sThr}")
            if g in S["ds"]: self.dsop(S["ds"][g], g, par)
            if g in S["dma"]:
                kind, n = S["dma"][g][:2]
                self.o(pf_ins(self.cfg, par) if kind == "PF" else dmaV_ins(n) if kind == "DV" else dmaK_ins(n))
            for x in S["vec"][g]:
                if 'a' in self.cfg.abl and x[0] == "add" and x[1] not in (0, 4, 8): continue
                self.smop(x, par, sThrC if par == 0 else sThr)
            if 'm' in self.cfg.abl and g == 184:
                for qt in range(3):
                    self.o(f"v_smfmac_f32_16x16x64_bf16 v[{232+4*qt}:{235+4*qt}], v[228:231], v[{P0+24*(par^1)+8*qt}:{P0+24*(par^1)+8*qt+7}], v244")
            if 'M' in self.cfg.abl and g == 184:
                for qt in range(3):
                    for kk in range(2):
                        self.o(f"v_mfma_f32_16x16x32_bf16 v[{232+4*qt}:{235+4*qt}], v[228:231], {Pr(par^1,kk,qt)}, v[{232+4*qt}:{235+4*qt}]")
            if 'n' in self.cfg.abl and g % 32 == 20:
                self.o("s_nop 15"); self.o("s_nop 15")
            if 'e' in self.cfg.abl:
                used = sum(2 if x[0] == "exp" else 1 for x in S["vec"][g])
                for k in range(S["cap"][g] - used):
                    self.o(f"v_fma_f32 v{230 + (g + k) % 8}, v{S0 + (g * 5 + k) % 48}, {sC}, v{144 + g % 48}")
        self.dsq = [(tg, gp - 192) for tg, gp in self.dsq]

    def xlane(self, op, v, t):
        self.o(f"v_mov_b32 {t}, {v}")
        self.o("s_nop 1")
        self.o(f"v_permlane32_swap_b32 {v}, {t}")
        self.o("s_nop 1")
        self.o(f"{op} {v}, {v}, {t}")
        self.o(f"v_mov_b32 {t}, {v}")
        self.o("s_nop 1")
        self.o(f"v_permlane16_swap_b32 {v}, {t}")
        self.o("s_nop 1")
        self.o(f"{op} {v}, {v}, {t}")

    def slow(self, name, par, pcur, pend):
        self.lab(name)
        self.o("s_nop 15")
        fr = [f"v{ET0+qt}" for qt in range(3)]
        nr = [f"v{ET0+3+qt}" for qt in range(3)]
        wk = [f"v{ET0+6}", f"v{ET0+7}", "v252", "v255"]
        tt, tu = wk[0], wk[1]
        for qt in range(3):
            xs = [Se(ks, qt, r) for ks in range(4) for r in range(4)]
            n = nr[qt]
            self.o(f"v_log_f32 {tt}, {Lr(par^1,qt)}")
            self.o(f"v_max3_f32 {n}, {xs[0]}, {xs[1]}, {xs[2]}")
            for i in range(3, 15, 2): self.o(f"v_max3_f32 {n}, {n}, {xs[i]}, {xs[i+1]}")
            self.o(f"v_max3_f32 {n}, {n}, {xs[15]}, {tt}")
            self.xlane("v_max_f32", n, tu)
            self.o(f"v_max_f32 {n}, 0, {n}")
            self.o(f"v_ceil_f32 {n}, {n}")
            for r in range(4): self.o(f"v_sub_f32 {NMe(qt,r)}, {NMe(qt,r)}, {n}")
            self.o(f"v_min_f32 {tt}, 0x43800000, {n}")
            self.o(f"v_cvt_i32_f32 {tt}, {tt}")
            self.o(f"v_sub_u32 {tt}, 0, {tt}")
            self.o(f"v_ldexp_f32 {fr[qt]}, 1.0, {tt}")
        for dt in range(16):
            for qt in range(3):
                if Ob(dt, qt)[0] == "a":
                    for r in range(4): self.o(f"v_accvgpr_read_b32 {wk[r]}, {Oe(dt,qt,r)}")
                    for r in range(4): self.o(f"v_mul_f32 {wk[r]}, {wk[r]}, {fr[qt]}")
                    for r in range(4): self.o(f"v_accvgpr_write_b32 {Oe(dt,qt,r)}, {wk[r]}")
                else:
                    for r in range(4): self.o(f"v_mul_f32 {Oe(dt,qt,r)}, {Oe(dt,qt,r)}, {fr[qt]}")
        for buf in pend:
            for kk in range(2):
                for qt in range(3):
                    for j in range(4):
                        p = Pe3(buf, kk, qt, j)
                        self.o(f"v_lshlrev_b32 {tt}, 16, {p}")
                        self.o(f"v_and_b32 {tu}, 0xffff0000, {p}")
                        self.o(f"v_mul_f32 {tt}, {tt}, {fr[qt]}")
                        self.o(f"v_mul_f32 {tu}, {tu}, {fr[qt]}")
                        self.o(f"v_cvt_pk_bf16_f32 {p}, {tt}, {tu}")
        for qt in range(3):
            self.o(f"v_mul_f32 {Lr(par,qt)}, {Lr(par^1,qt)}, {fr[qt]}")
            for ks in range(4):
                for r in range(4): self.o(f"v_sub_f32 {wk[r]}, {Se(ks,qt,r)}, {nr[qt]}")
                for r in range(4): self.o(f"v_exp_f32 {wk[r]}, {wk[r]}")
                self.o("s_nop 0")
                for r in range(4): self.o(f"v_add_f32 {Lr(par,qt)}, {Lr(par,qt)}, {wk[r]}")
                j = 2 * (ks & 1)
                self.o(f"v_cvt_pk_bf16_f32 {Pe3(pcur,ks>>1,qt,j)}, {wk[0]}, {wk[1]}")
                self.o(f"v_cvt_pk_bf16_f32 {Pe3(pcur,ks>>1,qt,j+1)}, {wk[2]}, {wk[3]}")
        self.o("s_nop 3")
        self.o(f"s_setpc_b64 {sRet}")

    def final(self, S):
        cfg = self.cfg; o = self.o
        PBUF = [1, 0, 2]
        SB = 120
        M = []
        def dtmajor(dts, parts):
            qs = [0, 1, 2]; ps = list(parts)
            for dt in dts:
                for qt in qs:
                    for (tile, kk) in ps: M.append(("PV", dt, qt, tile, kk))
                    ps.reverse()
                qs.reverse()
        def qtmajor(dts, parts):
            dts = list(dts); ps = list(parts)
            for qt in range(3):
                for dt in dts:
                    for (tile, kk) in ps: M.append(("PV", dt, qt, tile, kk))
                    ps.reverse()
                dts.reverse()
        T = lambda *ts: [(t, kk) for t in ts for kk in range(2)]
        for sb in range(2):
            M += [("QK", sb, g) for g in range(96)]
            dtmajor(range(4), T(sb))
        NC = len(M)
        qtmajor(range(4), T(2))
        for gi in (1, 2):
            dtmajor(range(4 * gi, 4 * gi + 4), T(0))
            qtmajor(range(4 * gi, 4 * gi + 4), T(1, 2))
        qtmajor(range(12, 16), T(0, 1, 2))
        N = len(M)
        def frag(m):
            if m[0] == "QK":
                d = mfma_desc(m[2]); return ("K", m[1], d[1], d[3])
            return ("V", m[1], m[3], m[4])
        first = {}; lastu = {}; lastO = {}
        for i, m in enumerate(M):
            f = frag(m); first.setdefault(f, i); lastu[f] = i
            if m[0] == "PV": lastO[(m[1], m[2])] = i
        slot = {}; holder = {}
        fixed = {}
        for t in range(8):
            slot[("K", 0, 0, t)] = kslot(0, t); holder[kslot(0, t)] = ("K", 0, 0, t)
        for sb in range(2):
            for g, x in S["ds"].items():
                if x[0] == "K": fixed[sb * SB + g] = (("K", sb, x[1], x[2]), None, kslot(x[1], x[2]) ^ (8 * sb))
            vf = sorted((f for f in first if f[0] == "V" and sb * SB <= first[f] < (sb + 1) * SB), key=lambda f: first[f])
            for n in range(16):
                fixed[sb * SB + 72 + (3 * n) // 2] = (vf[n >> 1], n & 1, (n >> 1) ^ (8 * sb))
        for p in range(8): fixed[96 + 3 * p - (1 if p > 5 else 0)] = (("K", 1, 0, p), None, kslot(0, p) ^ 8)
        reads = [(f, u) for f in sorted((f for f in first if first[f] >= NC), key=lambda f: first[f]) for u in range(2)]
        def take(f, sl, g):
            if f not in slot:
                old = holder.get(sl)
                assert old is None or lastu[old] <= g, (f, sl, g, old)
                assert sl >= 0 or g >= SB + 95
                slot[f] = sl; holder[sl] = f
            assert first[f] - g >= 6, (f, g)
        def rd(f, u, g):
            if f[0] == "K":
                _, sb, ks, t = f
                o(f"ds_read_b128 {Fr(slot[f])}, {vK} offset:{KS[sb] + (16*(ks>>1) + (ks&1))*BLK + t*64}")
                self.dsq.append(((f, None), g))
            else:
                _, dt, tile, kk = f
                ad, base = [(vV, SLOT), (vV, 0), (vV2, KS[0])][tile]
                o(f"ds_read_b64_tr_b16 {Fh(slot[f], u)}, {ad} offset:{base + 16*kk*BLK + u*512 + dt*32}")
                self.dsq.append(((f, u), g))
        def tags(i):
            f = frag(M[i])
            if f[0] == "K": return [(f, None)] + ([("K", 0, f[3])] if f[1] == 0 and f[2] == 0 else [])
            return [(f, 0), (f, 1)]
        dma = {}
        ntail = sum(1 for g in cfg.dmaA if g > 96)
        for n, g in zip(range(ntail, 8), cfg.dma30):
            assert g not in fixed
            dma[g] = (n, m0V(0, n))
        for n, g in enumerate(cfg.dma31):
            assert g not in fixed and g > cfg.bY + 1
            dma[g] = (n, (m0V(0, n) - VS[0] + KS[0]) & 0xffffffff)
        pre = []; sv = self.L; self.L = pre
        for sw in ("v_permlane32_swap_b32", "v_permlane16_swap_b32"):
            for qt in range(3): o(f"v_mov_b32 v{ET0+qt}, {Lr(0,qt)}")
            for qt in range(3): o(f"{sw} {Lr(0,qt)}, v{ET0+qt}")
            for qt in range(3): o(f"v_add_f32 {Lr(0,qt)}, {Lr(0,qt)}, v{ET0+qt}")
        for qt in range(3): o(f"v_rcp_f32 {Lr(1,qt)}, {Lr(0,qt)}")
        o("s_nop 0")
        self.L = sv
        stream = [("txt", t.strip(), -1) for t in pre]
        RB = 64
        tb = 0
        for (dt, qt) in sorted(lastO, key=lambda k: lastO[k]):
            gi, dd = divmod(dt, 4)
            rdy = lastO[(dt, qt)]
            b = S0 + (tb % 6) * 8; tb += 1
            if Ob(dt, qt)[0] == "a":
                for r in range(4): stream.append(("txt", f"v_accvgpr_read_b32 v{b+r}, {Oe(dt,qt,r)}", rdy))
                for r in range(4): stream.append(("txt", f"v_mul_f32 v{b+r}, v{b+r}, {Lr(1,qt)}", rdy))
            else:
                for r in range(4): stream.append(("txt", f"v_mul_f32 v{b+r}, {Oe(dt,qt,r)}, {Lr(1,qt)}", rdy))
            stream.append(("txt", f"v_cvt_pk_bf16_f32 v{b+4}, v{b}, v{b+1}", rdy))
            stream.append(("txt", f"v_cvt_pk_bf16_f32 v{b+5}, v{b+2}, v{b+3}", rdy))
            if tb % 2 == 1: held = (b, dd)
            else:
                stream.append(("ds", f"ds_write2_b64 {vOW}, v[{held[0]+4}:{held[0]+5}], v[{b+4}:{b+5}] offset0:{held[1]*4} offset1:{dd*4}", rdy, ("W", dt, qt)))
            if tb % 4 == 0:
                for j in (2 * qt, 2 * qt + 1):
                    stream.append(("ds", f"ds_read_b128 v[{RB+4*j}:{RB+4*j+3}], {vOR} offset:{(j&1)*8*OROW}", rdy, ("R", gi, j)))
        def emit_item(it, now):
            if it[0] == "txt": o(it[1])
            elif it[0] == "ds":
                o(it[1]); self.dsq.append((it[3], now))
            else:
                _, gi, j = it
                idx = max(i for i, (tg, gp) in enumerate(self.dsq) if tg == ("R", gi, j))
                if idx >= self.cov:
                    n = min(15, len(self.dsq) - 1 - idx); self.cov = len(self.dsq) - n
                    o(f"s_waitcnt lgkmcnt({n})")
                so = ["0", "s48", "s49"][j // 2]
                o(f"buffer_store_dwordx4 v[{RB+4*j}:{RB+4*j+3}], {vOG if j % 2 == 0 else vOG2}, {sO}, {so} offen offset:{gi*128}{POL['o']}")
        e = {}
        def sm_step(sb, g, c):
            par = sb ^ 1; pb = PBUF[sb + 1]
            avail = e["ne"] < 48 and g >= 8 * (e["ne"] // 4) + 7 + 5
            can_exp = (c >= 2 and avail and e["ne"] - 2 * e["nc"] < NET and e["ne"] - e["na"] < NET)
            can_add = e["na"] < e["ne"] and e["expgap"][e["na"]] != g
            can_cvt = 2 * e["nc"] + 1 < e["ne"] and e["expgap"][2 * e["nc"] + 1] != g
            if can_exp:
                self.smop(("exp", e["ne"]), par, sThr, pb); e["expgap"][e["ne"]] = g; e["ne"] += 1; return 2
            if can_add and (e["na"] <= 2 * e["nc"] or not can_cvt):
                self.smop(("add", e["na"]), par, sThr, pb); e["na"] += 1; return 1
            if can_cvt:
                self.smop(("cvt", e["nc"]), par, sThr, pb); e["nc"] += 1; return 1
            if e["na"] == 48 and e["nc"] == 24 and e["chk"] == 0:
                self.smop(("max3",), par, sThr, pb); e["chk"] = 1; return 1
            if e["chk"] == 1:
                o(f"v_cmp_lt_f32 vcc, {sThr}, {vCHK}"); e["chk"] = 2; return 1
            return 0
        at = {-1: 0}
        nread = 0; pos = 0; stq = []; wq = []; laststore = -10
        for g in range(N):
            m = M[g]
            sb, gl = divmod(g, SB)
            if g < NC and gl == 0: e.update(ne=0, na=0, nc=0, chk=0, expgap={})
            at[g] = len(self.L)
            f = frag(m)
            assert holder[slot[f]] == f
            if m[0] == "QK":
                _, ks, qt, t, fst = mfma_desc(m[2])
                o(f"v_mfma_f32_16x16x32_bf16 {Sr(ks,qt)}, {Fr(slot[f])}, {Qr(qt,t)}, {NMr(qt) if fst else Sr(ks,qt)}")
            else:
                _, dt, qt, tile, kk = m
                o(f"v_mfma_f32_16x16x32_bf16 {Or(dt,qt)}, {Fr(slot[f])}, {Pr3(PBUF[tile],kk,qt)}, {Or(dt,qt)}")
            c = 2
            isb = g < NC and gl == cfg.bY
            if isb:
                o(f"s_waitcnt vmcnt({8 if sb == 0 else 0}) lgkmcnt(0)"); self.dsq = []; self.cov = 0
            if g + 1 < N and not isb:
                n = self.need_wait(tags(g + 1), g)
                if n is not None: o(f"s_waitcnt lgkmcnt({n})")
            if g < NC and gl == cfg.bY + 1:
                o("s_barrier"); c -= 1
            if g + 1 in dma:
                o(f"s_add_u32 m0, {sVM}, {dma[g + 1][1]}"); c -= 1
            if g - 1 in dma and dma[g - 1][0] in (3, 7):
                o(f"s_add_u32 {sVoff}, {sVoff}, {4096 if dma[g - 1][0] == 3 else 32768 - 4096}")
            if g < NC and gl == SB - 1:
                gg = gl + 1
                while e["chk"] < 2:
                    prev = self.L[-1].split()
                    k = sm_step(sb, gg, 2); gg += 1
                    cur = self.L[-1].replace(",", " ").split()
                    if prev[0] == "v_exp_f32" and cur[0] != "v_exp_f32" and prev[1].rstrip(",") in cur[2:]:
                        self.L.insert(len(self.L) - 1, "    s_nop 0")
                o("s_nop 4")
                o(f"s_cbranch_vccnz L_trf{sb}")
                self.lab(f"L_nosf{sb}")
                continue
            dsdone = False
            if g in fixed:
                f2, u, sl = fixed[g]
                take(f2, sl, g); rd(f2, u, g); dsdone = True
            elif g >= SB + 96 and nread < len(reads):
                f2, u = reads[nread]
                ok = first[f2] - g <= cfg.flead and not (g < NC and g % 3 == 2)
                if ok and f2 not in slot:
                    fr_ = [sl for sl in list(range(16)) + list(range(-16, 0)) if sl not in holder or lastu[holder[sl]] <= g]
                    if fr_: take(f2, fr_[0], g)
                    else: ok = False
                if ok:
                    assert first[f2] - g >= 6, (f2, g)
                    rd(f2, u, g); nread += 1; dsdone = True
            if dsdone: c -= 1
            if g in dma:
                o(dmaV_ins(dma[g][0])); c = 0
            if g < NC:
                while c > 0 and e["chk"] < 2:
                    k = sm_step(sb, gl, c)
                    if k == 0: break
                    c -= k
            else:
                k = 0
                if wq:
                    it = wq.pop(0)
                    emit_item(it, g); k += (2 if it[3][0] == "W" else 1)
                    if it[3][0] == "R": stq.append((("st", it[3][1], it[3][2]), g))
                elif stq and g - laststore >= cfg.stgap and g - stq[0][1] >= 4:
                    emit_item(stq.pop(0)[0], g); laststore = g; k += 2
                ratio = cfg.epi_ratio - (1 if dsdone and g - NC > cfg.fast0 else 0)
                while pos < len(stream) and k < ratio and len(wq) < 3:
                    it = stream[pos]
                    rdy = it[2]
                    if rdy > g or len(self.L) - at[rdy] <= 9: break
                    if it[0] == "ds":
                        if it[3][0] == "R": assert not any(x[0][2] == it[3][2] for x in stq)
                        wq.append(it); pos += 1; continue
                    emit_item(it, g); pos += 1; k += 1
        assert nread == len(reads)
        o("s_nop 7")
        rest = wq + stream[pos:]
        stq = [(x[0], -100) for x in stq]
        for i, it in enumerate(rest):
            if stq and i - stq[0][1] >= 10: emit_item(stq.pop(0)[0], N + 10)
            emit_item(it, N + 10)
            if it[0] == "ds" and it[3][0] == "R":
                assert not any(x[0][2] == it[3][2] for x in stq)
                stq.append((("st", it[3][1], it[3][2]), i))
        for x in stq: emit_item(x[0], N + 10)

def gen(cfg):
    POL['kv'] = (' ' + cfg.kvpol) if cfg.kvpol else ''
    POL['q'] = (' ' + cfg.qpol) if cfg.qpol else ''
    POL['o'] = (' ' + cfg.opol) if cfg.opol else ''
    SNAKE[0] = cfg.snake
    shifts = {1: [0], 2: [0, 2], 4: [0, 1, 2, 3]}[cfg.ncopy]
    SS = [build_schedule(cfg, sh) for sh in shifts]
    for S in SS: verify_frags(S, cfg)
    E = Emit(cfg)
    o = E.o
    E.L.append(f"; @launch grid=(256,1,1) block=(256,1,1) lds={LDS_BYTES}")
    E.L.append('.amdgcn_target "amdgcn-amd-amdhsa--gfx950"')
    E.L.append(".text")
    E.L.append(f".globl {NAME}")
    E.L.append(".p2align 8")
    E.L.append(f".type {NAME},@function")
    E.lab(NAME)
    o("s_cmp_ge_u32 s2, 256")
    o("s_cbranch_scc1 L_end")
    o("s_load_dwordx4 s[32:35], s[0:1], 0")
    o("s_load_dwordx4 s[36:39], s[0:1], 16")
    if cfg.stamp:
        o("s_load_dwordx2 s[60:61], s[0:1], 40")
        o("s_memtime s[64:65]")
        o("s_memrealtime s[66:67]")
    npf = 0
    if cfg.prefetch_code:
        o("s_getpc_b64 s[46:47]")
        E.lab("L_pc")
        o("s_bfe_u32 s40, s2, 0x30003")
        o("s_lshl_b32 s40, s40, 12")
        o("v_lshl_add_u32 v254, v0, 4, s40")
        o("v_min_u32 v255, L_codeend - L_pc - 4, v254")
        o(f"global_load_dword {vPF}, v255, s[46:47]")
    o("s_and_b32 s40, s2, 7")
    o("s_lshr_b32 s41, s2, 4")
    o("s_lshl_b32 s41, s41, 3")
    o("s_or_b32 s40, s40, s41")
    o("s_lshr_b32 s41, s2, 3")
    o("s_and_b32 s41, s41, 1")
    o("s_lshl_b32 s42, s40, 20")
    if 'h' in cfg.abl:
        o("s_and_b32 s42, s2, 7"); o("s_lshl_b32 s42, s42, 20")
    o("s_lshl_b32 s43, s40, 1")
    o("s_add_u32 s43, s43, s41")
    o("s_mul_i32 s43, s43, 98304")
    o("v_lshrrev_b32 v250, 6, v0")
    o("v_and_b32 v251, 63, v0")
    o("v_readfirstlane_b32 s20, v250")
    o(f"v_lshlrev_b32 {vDK}, 4, v251")
    o("s_mov_b32 s6, 0x100000"); o("s_mov_b32 s7, 0x20000")
    o("s_mov_b32 s14, 98304"); o("s_mov_b32 s15, 0x20000")
    o(f"s_mul_i32 {sKM}, s20, {8*BLK}")
    o(f"s_lshl_b32 {sKoff}, s20, 13")
    o("s_mul_i32 s50, s20, 24576")
    o("s_lshr_b32 s44, s20, 1")
    o("s_lshl_b32 s44, s44, 4")
    o("s_and_b32 s45, s20, 1")
    o("s_add_u32 s44, s44, s45")
    o(f"s_mul_i32 s44, s44, {BLK}")
    o(f"s_add_u32 {sVM}, s44, {VS[0]}")
    o(f"s_mov_b32 m0, {sKM}")
    o("s_waitcnt lgkmcnt(0)")
    o("s_add_u32 s4, s34, s42"); o("s_addc_u32 s5, s35, 0")
    if cfg.pstamp == 2: o("s_memtime s[86:87]")
    def ps(k):
        if cfg.pstamp == 2: return
        if cfg.pstamp: o(f"s_memtime s[{86+2*k}:{87+2*k}]")
    def burst(srd, soff, d1, d2, pol):
        for n in range(8):
            o(f"buffer_load_dwordx4 {vDK}, {srd}, {soff} offen offset:{(n&3)*1024}{pol} lds")
            if n < 7:
                o(f"s_add_u32 m0, m0, {d2 if n == 3 else d1}")
                o(f"s_add_u32 {soff}, {soff}, 4096" if n == 3 else "s_nop 0")
    QD = (2 * BLK - 1024, 2 * BLK + 3072); KD = (BLK - 1024, BLK + 3072)
    o("s_add_u32 s12, s32, s43"); o("s_addc_u32 s13, s33, 0")
    if cfg.pretouch:
        if 'q' in cfg.pretouch: o(f"buffer_load_dword {vPF}, off, {sQ}, s50{POL['q']}")
        if 'v' in cfg.pretouch:
            o("s_add_u32 s8, s36, s42"); o("s_addc_u32 s9, s37, 0"); o("s_mov_b32 s10, 0x100000"); o("s_mov_b32 s11, 0x20000")
            o(f"buffer_load_dword {vPF}, off, {sV}, 0{POL['kv']}")
        if 'o' in cfg.pretouch:
            o("s_add_u32 s16, s38, s43"); o("s_addc_u32 s17, s39, 0"); o("s_mov_b32 s18, 98304"); o("s_mov_b32 s19, 0x20000")
            o(f"buffer_load_dword {vPF}, off, {sO}, 0{POL['kv']}")
    burst(sK, sKoff, KD[0], KD[1], POL['kv'])
    o(f"s_add_u32 m0, {sVM}, {SLOT}")
    if cfg.stag & 1:
        o("s_bitcmp1_b32 s2, 0")
        o(f"s_cbranch_scc{cfg.stagpol} L_sg0")
        o("s_waitcnt vmcnt(0)")
        E.lab("L_sg0")
    if cfg.pstamp == 2: o("s_memtime s[88:89]")
    o("s_barrier")
    if cfg.pstamp == 2: o("s_memtime s[90:91]")
    burst(sQ, "s50", QD[0], QD[1], POL['q'])
    if cfg.pstamp == 2: o("s_memtime s[92:93]")
    o("s_add_u32 s50, s50, 4096")
    o("s_add_u32 s8, s36, s42"); o("s_addc_u32 s9, s37, 0"); o("s_mov_b32 s10, 0x100000"); o("s_mov_b32 s11, 0x20000")
    o("s_add_u32 s16, s38, s43"); o("s_addc_u32 s17, s39, 0"); o("s_mov_b32 s18, 98304"); o("s_mov_b32 s19, 0x20000")
    o("s_mov_b32 s48, 8192"); o("s_mov_b32 s49, 16384")
    o("v_and_b32 v252, 15, v251")
    o("v_lshrrev_b32 v241, 4, v251")
    o("v_lshrrev_b32 v254, 5, v251")
    o("v_and_b32 v255, 31, v251")
    o("v_lshlrev_b32 v255, 4, v255")
    o(f"v_lshl_add_u32 {vDV}, v254, 10, v255")
    o(f"s_lshl_b32 {sVoff}, s20, 13")
    o("v_and_b32 v254, 3, v252")
    o("v_lshrrev_b32 v255, 3, v252")
    o("v_lshl_or_b32 v247, v255, 2, v254")
    o("v_bfe_u32 v246, v252, 2, 1")
    o(f"v_mul_u32_u24 v254, {2*BLK}, v247")
    o("v_lshl_add_u32 v254, v246, 9, v254")
    o(f"v_lshl_add_u32 {vK}, v241, 4, v254")
    o(f"v_add_u32 v248, {sVM}, {vK}")
    o(f"v_add_u32 v248, {SLOT}, v248")
    o("v_lshl_add_u32 v247, v247, 1, v246")
    o("v_and_b32 v246, 1, v241")
    o("v_lshrrev_b32 v245, 2, v252")
    o("v_lshrrev_b32 v244, 1, v241")
    o("v_and_b32 v243, 3, v252")
    o("v_lshl_add_u32 v254, v245, 1, v244")
    o("v_lshl_add_u32 v254, v246, 3, v254")
    o(f"v_mul_u32_u24 v254, {BLK}, v254")
    o("v_lshl_add_u32 v254, v243, 3, v254")
    o(f"v_add_u32 {vV}, {VS[0]}, v254")
    o(f"v_mov_b32 {vV2}, v254")
    o(f"v_mul_u32_u24 v254, {OWAVE}, v250")
    o(f"v_add_u32 v254, {OBASE}, v254")
    o(f"v_mul_u32_u24 v255, {OROW}, v247")
    o(f"v_add_u32 {vOW}, v254, v255")
    o(f"v_lshl_add_u32 {vOW}, v241, 3, {vOW}")
    o("v_lshrrev_b32 v255, 3, v251")
    o(f"v_mul_u32_u24 {vOR}, {OROW}, v255")
    o(f"v_add_u32 {vOR}, {vOR}, v254")
    o("v_and_b32 v254, 7, v251")
    o(f"v_lshl_add_u32 {vOR}, v254, 4, {vOR}")
    o(f"v_mul_u32_u24 {vOG}, 48, v250")
    o(f"v_add_u32 {vOG}, {vOG}, v255")
    o(f"v_lshlrev_b32 {vOG}, 9, {vOG}")
    o(f"v_lshl_add_u32 {vOG}, v254, 4, {vOG}")
    o(f"v_add_u32 {vOG2}, 4096, {vOG}")
    o(f"s_mov_b32 {sC}, {hex(f2u(math.log2(math.e) / 16.0))}")
    o(f"s_mov_b32 {sThr}, {hex(f2u(cfg.thr))}")
    o(f"s_mov_b32 {sThrC}, {sThr}")
    o(f"s_mov_b32 {sCnt}, 14")
    o("s_mov_b32 s52, 0xffff0000")
    o("s_mov_b32 s55, 0")
    o("s_mov_b32 s57, 1")
    if cfg.pfgap:
        o("s_lshl_b32 s58, s41, 2"); o("s_add_u32 s58, s58, s20")
        o(f"s_lshl_b32 s58, s58, {10 + cfg.pfsh}")
        o(f"s_add_u32 s59, s58, {(cfg.pfV[1] - 1) * (8192 << cfg.pfsh)}")
        o(f"s_add_u32 s51, s58, {cfg.pfK[1] * (8192 << cfg.pfsh)}")
        o(f"s_add_u32 s44, s4, {(32 - cfg.pfK[0]) * 32768}"); o("s_addc_u32 s45, s5, 0")
        o(f"s_mov_b32 s46, {cfg.pfK[0] * 32768}"); o("s_mov_b32 s47, 0x20000")
    o(f"s_add_u32 s53, {sVM}, {SLOT}")
    o(f"s_mov_b32 m0, {sVM}")
    def gsteps(m, so):
        o(f"s_movk_i32 s54, {m[0]}"); o(f"s_movk_i32 s56, {m[1]}"); o(f"s_movk_i32 s62, {m[2]}"); o(f"s_movk_i32 s63, {so}")
    gsteps((2 * BLK, 4 * BLK, 8 * BLK), 1024)
    o(f"v_mov_b32 v240, {vDK}")
    o(f"v_mov_b32 v{T0+10}, {sC}"); o(f"v_mov_b32 v{T0+11}, {sC}")
    ps(0)
    if cfg.stag & 2:
        o("s_bitcmp1_b32 s2, 0")
        o(f"s_cbranch_scc{cfg.stagpol} L_sg1")
        o("s_waitcnt vmcnt(0)")
        E.lab("L_sg1")
    if cfg.pstamp == 2: o("s_memtime s[94:95]")
    burst(sQ, "s50", QD[0], QD[1], POL['q'])
    if cfg.pstamp == 2: o("s_memtime s[96:97]")
    o("s_add_u32 s50, s50, 4096")
    o("s_waitcnt vmcnt(16)")
    o("s_barrier")
    ps(1)
    def kreg(ks, t): return Fr(8 * ks + t) if ks < 2 else f"a[{32*(ks-2)+4*t}:{32*(ks-2)+4*t+3}]"
    def kpre():
        for ks in range(4):
            for t in range(8): o(f"ds_read_b128 {kreg(ks,t)}, {vK} offset:{KS[0] + (16*(ks>>1)+(ks&1))*BLK + t*64}")
    def moves(qt):
        for i in range(32): o(f"v_accvgpr_write_b32 a{Qb(qt,0)[1]+i}, v{Qb(2,0)[1]+i}")
        for kk in range(2):
            for j in range(4): o(f"v_mov_b32 {Pe(0,kk,qt,j)}, {Pe(0,kk,2,j)}")
        for r in range(4): o(f"v_mov_b32 {NMe(qt,r)}, {NMe(2,0)}")
        o(f"v_mov_b32 {Lr(1,qt)}, {Lr(1,2)}")
    kpre()
    o("s_waitcnt vmcnt(8)")
    ps(2)
    E.lab("L_q")
    qt = 2
    for t in range(8):
        o(f"ds_read_b128 v[{QRAW+4*t}:{QRAW+4*t+3}], v248 offset:{t*64}")
    o("s_mov_b32 m0, s53")
    o("s_waitcnt lgkmcnt(0)")
    extra = []
    gray = [("add", 0), ("add", 1), ("sub", 0), ("add", 2), ("add", 0), ("sub", 1), ("sub", 0)]
    for n in range(8):
        e_ = [f"buffer_load_dwordx4 v240, {sQ}, s50 offen{POL['kv']} lds"]
        if n < 7:
            op, bit = gray[n]
            e_ += [f"s_{op}_u32 m0, m0, {['s54', 's56', 's62'][bit]}", f"s_{op}_u32 s50, s50, {['s63', 2048, 4096][bit]}"]
        extra.append(e_)
    for ks in range(4):
        for t in range(8):
            i = ks * 8 + t
            cc = "0" if t == 0 else Sr(ks, qt)
            o(f"v_mfma_f32_16x16x32_bf16 {Sr(ks,qt)}, {kreg(ks,t)}, v[{QRAW+4*t}:{QRAW+4*t+3}], {cc}")
            if i == cfg.gb:
                if cfg.stag & 4:
                    o("s_bitcmp1_b32 s2, 0")
                    o(f"s_cbranch_scc{cfg.stagpol} L_sg2")
                    o("s_waitcnt vmcnt(0)")
                    E.lab("L_sg2")
                o("s_barrier")
            if i > cfg.gb and (i - cfg.gb) % cfg.gs == 1 and extra:
                for s_ in extra.pop(0): o(s_)
            o(f"v_lshlrev_b32 v{2*i}, 16, v{QRAW+i}")
            o(f"v_and_b32 v{2*i+1}, s52, v{QRAW+i}")
    t_ = f"v{T0+8}"
    xs = [Se(ks, qt, r) for ks in range(4) for r in range(4)]
    xp = [f"v[{S0+12*ks+4*qt+2*h}:{S0+12*ks+4*qt+2*h+1}]" for ks in range(4) for h in range(2)]
    cc_ = f"v[{T0+10}:{T0+11}]"
    fill = [f"v_pk_mul_f32 v[{2*i}:{2*i+1}], v[{2*i}:{2*i+1}], {cc_}" for i in range(32)]
    fill += [f"v_cvt_pk_bf16_f32 v{Qb(2,0)[1]+i}, v{2*i}, v{2*i+1}" for i in range(32)]
    def F_(n):
        for _ in range(n):
            if fill: o(fill.pop(0))
    o(f"v_max3_f32 {t_}, {xs[0]}, {xs[1]}, {xs[2]}")
    for i in range(3, 11, 2): o(f"v_max3_f32 {t_}, {t_}, {xs[i]}, {xs[i+1]}")
    F_(4)
    for i in range(11, 15, 2): o(f"v_max3_f32 {t_}, {t_}, {xs[i]}, {xs[i+1]}")
    o(f"v_max_f32 {t_}, {t_}, {xs[15]}")
    u_ = f"v{T0+9}"
    for sw in ("v_permlane32_swap_b32", "v_permlane16_swap_b32"):
        o(f"v_mov_b32 {u_}, {t_}"); F_(2)
        o(f"{sw} {t_}, {u_}"); F_(2)
        o(f"v_max_f32 {t_}, {t_}, {u_}")
    o(f"v_mul_f32 {t_}, {sC}, {t_}")
    for r in range(4): o(f"v_sub_f32 {NMe(qt,r)}, 0, {t_}")
    nmp = f"v[{208+4*qt}:{209+4*qt}]"
    for x in xp: o(f"v_pk_fma_f32 {x}, {x}, {cc_}, {nmp}")
    for i, x in enumerate(xs):
        o(f"v_exp_f32 {x}, {x}")
        if extra and i % 4 == 0:
            for s_ in extra.pop(0): o(s_)
    assert not extra
    F_(100)
    tp = f"v[{T0+8}:{T0+9}]"
    o(f"v_pk_add_f32 {tp}, {xp[0]}, {xp[1]}")
    for ks in range(4):
        for h in range(2):
            o(f"v_cvt_pk_bf16_f32 {Pe(0, ks>>1, qt, 2*(ks&1)+h)}, {Se(ks,qt,2*h)}, {Se(ks,qt,2*h+1)}")
            j = 2 * ks + h + 2
            if j < 8: o(f"v_pk_add_f32 {tp}, {tp}, {xp[j]}")
    o(f"v_add_f32 {Lr(1,qt)}, v{T0+8}, v{T0+9}")
    o("s_cmp_eq_u32 s55, 2")
    o("s_cbranch_scc1 L_qdone")
    o("s_cmp_eq_u32 s55, 1")
    o("s_cbranch_scc1 L_q1")
    ps(3)
    moves(0)
    o("s_mov_b32 s12, s4"); o("s_mov_b32 s13, s5"); o("s_mov_b32 s14, s6")
    o(f"s_add_u32 s50, {sKoff}, {32768-4096}")
    o(f"s_add_u32 s53, {sKM}, {KS[1]}")
    gsteps((BLK, 2 * BLK, 4 * BLK), 1024)
    o(f"v_subrev_u32 v248, {SLOT}, v248")
    o("s_mov_b32 s55, 1")
    o("s_waitcnt vmcnt(8)")
    ps(4)
    o("s_branch L_q")
    E.lab("L_q1")
    ps(5)
    moves(1)
    o("s_mov_b32 s12, s8"); o("s_mov_b32 s13, s9")
    o(f"s_mov_b32 s50, {sVoff}")
    o(f"s_mov_b32 s53, {sVM}")
    gsteps((8 * BLK, 2 * BLK, 4 * BLK), 512)
    o(f"v_mov_b32 v240, {vDV}")
    o(f"s_add_u32 {sVoff}, {sVoff}, 32768")
    o(f"s_add_u32 {sKoff}, {sKoff}, {2*32768-4096}")
    o(f"v_add_u32 v248, {SLOT}, v248")
    o("s_mov_b32 s55, 2")
    o("s_waitcnt vmcnt(8)")
    if cfg.stamp: o("s_memtime s[68:69]")
    o("s_branch L_q")
    E.lab("L_qdone")
    o("s_waitcnt vmcnt(8)")
    o("s_barrier")
    E.dsq = []; E.cov = 0
    for t in range(8): E.dsop(("K0", 0, t), 175 + 2 * t - 192, 1)
    if cfg.pfgap:
        o(f"v_lshlrev_b32 v254, {cfg.pfsh}, {vDK}")
        o(f"s_add_u32 s12, s8, {(32 - cfg.pfV[0]) * 32768}"); o("s_addc_u32 s13, s9, 0"); o(f"s_mov_b32 s14, {cfg.pfV[0] * 32768}")
    n = E.need_wait(E.frag_tags(0), -2)
    o(f"s_waitcnt lgkmcnt({n})")
    st0 = (list(E.dsq), E.cov)
    if 'm' in cfg.abl or 'M' in cfg.abl:
        o("v_and_b32 v244, 14, v251")
        o("v_cmp_eq_u32 vcc, 0, v244")
        o("v_mov_b32 v245, 0x3f803f80")
        for i in range(4): o(f"v_cndmask_b32 v{228+i}, 0, v245, vcc")
        for i in range(12): o(f"v_mov_b32 v{232+i}, 0")
        o("v_mov_b32 v244, 0x44444444")
        o("s_mov_b64 vcc, 0")
    if cfg.stamp:
        o("s_memtime s[70:71]")
    if cfg.istamp:
        o("s_memrealtime s[98:99]")
        o("s_mov_b32 s80, s60"); o("s_mov_b32 s81, s61"); o("s_mov_b32 s82, 0x100000"); o("s_mov_b32 s83, 0x20000")
        o("s_lshl_b32 s84, s2, 2"); o("s_add_u32 s84, s84, s20"); o("s_lshl_b32 s84, s84, 6")
        o(f"s_lshl_b32 s85, {sCnt}, 2"); o("s_add_u32 s84, s84, s85"); o("s_add_u32 s84, s84, 0x20000")
        o("s_waitcnt lgkmcnt(0)")
        o("v_mov_b32 v254, s98"); o("v_mov_b32 v255, 0")
        o("buffer_store_dword v254, v255, s[80:83], s84 offen")
    S0_ = build_schedule(cfg, 0, first=True)
    verify_frags(S0_, cfg)
    E.body(S0_, 0, first=True)
    assert (list(E.dsq), E.cov) == st0
    o("s_cmp_ge_u32 s20, 2")
    o("s_cbranch_vccnz L_tr_first")
    E.lab("L_ret_first")
    assert cfg.ncopy == 2
    o("s_cbranch_scc1 L_ret1")
    o("s_branch L_ret0")
    for c, S in enumerate(SS):
        E.L.append(".p2align 6")
        E.lab(f"L_loop{c}")
        E.inloop = True
        E.dsq, E.cov = list(st0[0]), st0[1]
        E.body(S, 0)
        assert (list(E.dsq), E.cov) == st0, (E.dsq, E.cov, st0)
        o(f"s_cbranch_vccnz L_tr{c}")
        E.lab(f"L_ret{c}")
        E.body(S, 1)
        assert (list(E.dsq), E.cov) == st0
        o(f"s_cbranch_vccz L_loop{c}")
        E.inloop = False
        o(f"s_call_b64 {sRet}, L_slow_1")
        o(f"s_branch L_loop{c}")
        E.lab(f"L_tr{c}")
        o(f"v_cmp_lt_f32 vcc, {sThr}, {vCHK}")
        o("s_nop 4")
        o(f"s_cbranch_vccz L_nos0_{c}")
        o(f"s_call_b64 {sRet}, L_slow_0")
        E.lab(f"L_nos0_{c}")
        o(f"s_cmp_lg_u32 {sCnt}, 0")
        o(f"s_cbranch_scc1 L_ret{c}")
        if c + 1 < len(SS): o("s_branch L_final")
    E.lab("L_final")
    if cfg.stamp:
        o("s_memtime s[72:73]")
    E.dsq, E.cov = list(st0[0]), st0[1]
    E.infinal = True
    E.final(SS[0])
    E.infinal = False
    if cfg.stamp:
        o("s_memtime s[74:75]")
        o("s_waitcnt vmcnt(0)")
        o("s_memtime s[76:77]")
        o("s_memrealtime s[78:79]")
        o("s_waitcnt lgkmcnt(0)")
        o("s_mov_b32 s80, s60"); o("s_mov_b32 s81, s61"); o("s_mov_b32 s82, 0x100000"); o("s_mov_b32 s83, 0x20000")
        regs = [64, 68, 70, 72, 74, 76, 66, 78]
        for i, r in enumerate(regs):
            o(f"v_mov_b32 v{96+i}, s{r}")
        o("v_mov_b32 v104, 0")
        o("s_lshl_b32 s84, s2, 2"); o("s_add_u32 s84, s84, s20"); o("s_lshl_b32 s84, s84, 5")
        o("buffer_store_dwordx4 v[96:99], v104, s[80:83], s84 offen")
        o("buffer_store_dwordx4 v[100:103], v104, s[80:83], s84 offen offset:16")
        if cfg.pstamp:
            o("s_add_u32 s84, s84, 65536")
            for i, r in enumerate([64, 86, 88, 90, 92, 94, 96, 68]):
                o(f"v_mov_b32 v{108+i}, s{r}")
            o("buffer_store_dwordx4 v[108:111], v104, s[80:83], s84 offen")
            o("buffer_store_dwordx4 v[112:115], v104, s[80:83], s84 offen offset:16")
    E.lab("L_end")
    o("s_endpgm")
    E.lab("L_codeend")
    E.lab("L_tr_first")
    o(f"s_call_b64 {sRet}, L_slow_0")
    o("s_branch L_ret_first")
    for sb in range(2):
        E.lab(f"L_trf{sb}")
        o(f"s_call_b64 {sRet}, L_slow_f{sb}")
        o(f"s_branch L_nosf{sb}")
    for par in range(2):
        E.slow(f"L_slow_{par}", par, par ^ 1, [])
    E.slow("L_slow_f0", 1, 0, [1])
    E.slow("L_slow_f1", 0, 2, [0, 1])
    o("s_endpgm")
    E.L.append('.section .rodata,"a"')
    E.L.append(".p2align 6")
    E.L.append(f".amdhsa_kernel {NAME}")
    E.L += ["  .amdhsa_next_free_vgpr 512", "  .amdhsa_next_free_sgpr 100", "  .amdhsa_accum_offset 256",
            "  .amdhsa_group_segment_fixed_size 0", "  .amdhsa_kernarg_size 48", "  .amdhsa_user_sgpr_count 2",
            "  .amdhsa_user_sgpr_kernarg_segment_ptr 1", "  .amdhsa_system_sgpr_workgroup_id_x 1",
            ".end_amdhsa_kernel"]
    return "\n".join(E.L) + "\n", SS[0]

def show(S):
    for g in range(192):
        print(g, mfma_desc(g), "cap", S["cap"][g], "| sc", [x[0] for x in S["scal"][g]], "| ds", S["ds"].get(g), "| dma", S["dma"].get(g), "|", S["vec"][g])

HEADER = """; Kernarg layout for this problem (48 bytes, ptrs only, base s[0:1]):
;
; Flash-attention forward, written with a hand-made generator script (no compiler output).
;  * one workgroup = 192 queries of one head, 4 waves x 48 queries, 512 registers per wave;
;  * K/V tiles of 64 keys stream through a 4-slot LDS ring by LDS-DMA (padded, conflict-free images)
;  * softmax reference = row max of the first key tile, folded into the MFMA C operand; after every tile
;    the row sums are checked and, above 2^20, L_slow_* raises the reference to the running max
;    (rounded up to an integer) and rescales O, l and pending P by that exact power of two
;  * the PV products of the last three tiles are ordered so that the output is normalised,
"""

if __name__ == "__main__":
    cfg = Cfg()
    out = "standalone__mha_softmax__near_ridge.s"
    for a in sys.argv[1:]:
        if a == "show": continue
        if a.startswith("out="): out = a[4:]; continue
        k, v = a.split("=")
        assert hasattr(cfg, k), k
        setattr(cfg, k, eval(v))
    txt, S = gen(cfg)
    open(out, "w").write(HEADER + txt)
    if "show" in sys.argv: show(S)
```

```python
import sys, math, struct

NAME = "standalone__mha_softmax__near_ridge_kernel"

def f2u(x):
    return struct.unpack("<I", struct.pack("<f", x))[0]

class Cfg:
    bY = 67
    bX = 173
    lat = 7
    dmaA = [180, 186, 3, 11, 19, 27, 35, 43]
    dmaB = [74, 83, 92, 101, 110, 119, 128, 137]
    ncopy = 2
    smend = 186
    snake = True
    stamp = False
    pstamp = False
    istamp = False
    pfat = []
    pfV = (3, 11)
    pfK = (2, 11)
    pfsh = 1
    pfgap = 152
    pfpol = ''
    prefetch_code = True
    stag = 3
    stagpol = 1
    gb = 14
    gs = 4
    dma0 = [[1,5,9,13,18,23,29,35],[43,53,63,74,80,86,92,98],[107,116,125,134,143,152,161,167]]
    v0split = 8
    pretouch = ''
    thr = 2.0**20
    obias = 0.0
    refoff = -34.0
    abl = ''
    kvpol = 'nt'
    qpol = 'nt'
    opol = 'sc1 nt'
    epi_ratio = 3
    flead = 60
    fast0 = 24
    vqmax = 14
    pkepi = False
    pkmin = 3
    pkdbg = 0
    dma30 = [1, 5, 9, 13, 17, 21, 25, 29]
    kg = [[2,4,6,8,10,12,14,16],[26,28,30,32,34,36,38,40],[46,48,50,52,54,56,58,60]]
    evenpace = False
    dma31 = [74, 83, 92, 101, 121, 125, 129, 133]
    stgap = 3
    bZ = 99

BLK = 1040
SLOT = 32 * BLK
KS = [0, SLOT]
VS = [2 * SLOT, 3 * SLOT]
LDS_BYTES = 4 * SLOT
OROW = 272
OGRP = 16 * OROW
OWAVE = OGRP
OBASE = KS[1]

def Qb(qt, t): return ("a", 128 + 32 * qt + 4 * t) if qt < 2 else ("v", 64 + 4 * t)
def Qr(qt, t): k, b = Qb(qt, t); return f"{k}[{b}:{b+3}]"
S0 = 96
def Sr(ks, qt): b = S0 + 12 * ks + 4 * qt; return f"v[{b}:{b+3}]"
def Se(ks, qt, r): return f"v{S0 + 12 * ks + 4 * qt + r}"
P0 = 144
def Pr(par, kk, qt): b = P0 + 24 * par + 12 * kk + 4 * qt; return f"v[{b}:{b+3}]"
def Pe(par, kk, qt, j): return f"v{P0 + 24 * par + 12 * kk + 4 * qt + j}"
QRAW = 168
ET0 = 192; NET = 8
def Lr(par, qt): return f"v{200 + 3 * par + qt}"
vCHK, vPF = "v206", "v253"
vV2 = "v207"
PX = 228
def Pb(buf): return PX if buf == 2 else P0 + 24 * buf
def Pr3(buf, kk, qt): b = Pb(buf) + 12 * kk + 4 * qt; return f"v[{b}:{b+3}]"
def Pe3(buf, kk, qt, j): return f"v{Pb(buf) + 12 * kk + 4 * qt + j}"
def NMr(qt): return f"v[{208+4*qt}:{211+4*qt}]"
def NMe(qt, r): return f"v{208+4*qt+r}"
vK, vV, vDK, vDV = "v220", "v221", "v222", "v223"
vOW, vOR, vOG, vOG2 = "v224", "v225", "v226", "v227"
vBP = "v254"
T0 = 228
def Ob(dt, qt):
    i = dt * 3 + qt
    return ("v", 4 * i) if i < 16 else ("a", 4 * (i - 16))
def Or(dt, qt): k, b = Ob(dt, qt); return f"{k}[{b}:{b+3}]"
def Oe(dt, qt, r): k, b = Ob(dt, qt); return f"{k}{b+r}"
F0 = 192
def Fr(slot): b = F0 + 4 * slot; return f"a[{b}:{b+3}]"
def Fh(slot, u): b = F0 + 4 * slot + 2 * u; return f"a[{b}:{b+1}]"

sK, sV, sQ, sO = "s[4:7]", "s[8:11]", "s[12:15]", "s[16:19]"
sW, sKM, sVM, sKoff, sVoff, sC, sThr, sCnt, sThrC = "s20", "s21", "s22", "s23", "s24", "s26", "s27", "s28", "s29"
sRet = "s[30:31]"
POL = {}
SNAKE = [True]

def mfma_desc(g):
    if g < 96:
        ks, rem = divmod(g, 24); c, p = divmod(rem, 8)
        if not SNAKE[0]: return ("QK", ks, c, p, p == 0)
        qt = c if ks % 2 == 0 else 2 - c
        fwd = (c % 2 == 0) == (ks % 2 == 0)
        return ("QK", ks, qt, p if fwd else 7 - p, p == 0)
    g -= 96
    dt, rem = divmod(g, 6); c, p = divmod(rem, 2)
    if not SNAKE[0]: return ("PV", dt, c, p)
    qt = c if dt % 2 == 0 else 2 - c
    fwd = (c % 2 == 0) == (dt % 2 == 0)
    return ("PV", dt, qt, p if fwd else 1 - p)
def kpos(ks, t):
    return t if (ks % 2 == 0 or not SNAKE[0]) else 7 - t
def kslot(ks, t): return 8 * (ks & 1) + kpos(ks, t)
def vpos(dt, kk): return kk if (dt % 2 == 0 or not SNAKE[0]) else 1 - kk
def vslot(dt, kk): return (2 * dt + vpos(dt, kk)) % 16
def chains():
    return [(mfma_desc(8 * c)[1], mfma_desc(8 * c)[2]) for c in range(12)]
def elem_of(i):
    ks, qt = chains()[i // 4]
    return ks, qt, i % 4

def build_schedule(cfg, shift=0, first=False):
    N = 192
    ds = {}
    for p in range(8):
        ds[cfg.kg[0][p]] = ("K", 1, kpos(1, p))
        ds[cfg.kg[1][p]] = ("K", 2, p)
        ds[cfg.kg[2][p]] = ("K", 3, kpos(3, p))
        ds[175 + 2 * p] = ("K0", 0, p)
    for n in range(64):
        dt = n >> 2
        ds[72 + (3 * n) // 2] = ("V", dt, vpos(dt, (n >> 1) & 1), n & 1)
    dma = {}
    def place(g, d):
        while g in ds or g in dma or (g - 1) in dma or (g + 1) in dma: g += 1
        dma[g] = d
    if first:
        bar = (cfg.bY, cfg.bY + 1, cfg.bY + 2)
        for n, g in enumerate(cfg.dma0[0]): place(g, ("DK", n, 0))
        for n, g in enumerate(cfg.dma0[1]): place(g, ("DV", n, 1))
        for n, g in enumerate(cfg.dma0[2]): place(g, ("DK", n, 1))
        for n, g in enumerate(cfg.dmaA):
            if g > 96: place(g, ("DV", n, 0))
        order = [dma[g][::2] for g in sorted(dma)]
        assert order == sorted(order, key=lambda x: [("DK", 0), ("DV", 1), ("DK", 1), ("DV", 0)].index(x))
        assert not any(g in bar for g in dma)
        assert all(cfg.bY + 1 < g < cfg.bX - 1 for g, d in dma.items() if d[::2] == ("DK", 1))
    else:
        for n, g in enumerate(cfg.dmaA): place(g + shift, ("DV", n))
        for n, g in enumerate(cfg.dmaB): place(g + shift, ("DK", n))
        if cfg.pfgap: place(cfg.pfgap + shift, ("PF", 0))
        assert all(g < cfg.bY or cfg.bX + 1 < g < 190 for g, d in dma.items() if d[0] == "DV")
        assert all(cfg.bY + 1 < g < cfg.bX for g, d in dma.items() if d[0] == "DK")
    scal = {g: [] for g in range(N)}
    for g, d in dma.items():
        assert g >= 1
        if d[0] == "PF":
            scal[g + 1].append(("pfoff",)); scal[g + 2].append(("pfclamp",)); continue
        scal[g - 1].append(("m0", d))
        if d[1] in (3, 7):
            scal[g + 1].append(("soff", d))
    scal[cfg.bY].append(("bwait",)); scal[cfg.bY + 1].append(("barrier",))
    scal[cfg.bX].append(("bwait",)); scal[cfg.bX + 1].append(("barrier",))
    if not first:
        scal[168].append(("loopcnt",)); scal[169].append(("loopcmp",)); scal[170].append(("loopsel",))
    cap = {}
    for g in range(N):
        c = 2
        if g in ds: c -= 1
        if g in dma: c = 0
        if (g + 1) in dma: c -= 1
        if g in (190, 191, cfg.bY, cfg.bY + 1, cfg.bX, cfg.bX + 1): c = 0
        c -= max(0, len(scal[g]) - 1)
        cap[g] = max(c, 0)
    vec = {g: [] for g in range(N)}
    g0 = 12
    total_cap = sum(cap[g] for g in range(g0, cfg.smend + 1))
    need = 48 * 2 + 48 + 24 + 2
    assert total_cap >= need, (total_cap, need)
    e = dict(ne=0, na=0, nc=0, chk=0, expgap={})
    used = 0; capseen = 0
    for g in range(g0, 190):
        c = cap[g]
        capseen += c
        allowed = capseen * (need + 4) / total_cap + 2
        if first: allowed = 1000
        if cfg.evenpace: allowed = (g - g0 + 1) * (need + 4) / (cfg.smend - g0) + 2
        while c > 0 and e["chk"] < 2:
            if used >= allowed: break
            avail = e["ne"] < 48 and g >= 8 * (e["ne"] // 4) + 7 + 5
            can_exp = (c == 2 and not vec[g] and avail and e["ne"] - 2 * e["nc"] < NET and e["ne"] - e["na"] < NET)
            can_add = e["na"] < e["ne"] and e["expgap"][e["na"]] != g
            can_cvt = 2 * e["nc"] + 1 < e["ne"] and e["expgap"][2 * e["nc"] + 1] != g
            if can_exp:
                vec[g].append(("exp", e["ne"])); e["expgap"][e["ne"]] = g; e["ne"] += 1; c -= 2; used += 2
            elif can_add and (e["na"] <= 2 * e["nc"] or not can_cvt):
                vec[g].append(("add", e["na"])); e["na"] += 1; c -= 1; used += 1
            elif can_cvt:
                vec[g].append(("cvt", e["nc"])); e["nc"] += 1; c -= 1; used += 1
            elif e["na"] == 48 and e["nc"] == 24 and e["chk"] == 0:
                vec[g].append(("max3",)); e["chk"] = 1; c -= 1; used += 1
                break
            elif e["chk"] == 1:
                assert g > 171 or first
                vec[g].append(("cmp",)); e["chk"] = 2; c -= 1; used += 1
            else:
                break
    assert e["chk"] == 2, "SM did not fit"
    return dict(ds=ds, dma=dma, scal=scal, vec=vec, cap=cap)

def verify_frags(S, cfg):
    pool = {}
    for rep in range(3):
        for g in range(192):
            d = mfma_desc(g)
            if rep > 0:
                if d[0] == "QK":
                    sl = kslot(d[1], d[3]); want = [("K", d[1], d[3], rep)] * 2
                else:
                    sl = vslot(d[1], d[3]); want = [("V", d[1], d[3], 0, rep), ("V", d[1], d[3], 1, rep)]
                for u in range(2):
                    tag, at = pool[(sl, u)]
                    assert tag == want[u], (g, d, tag, want[u])
                    assert rep * 192 + g - at >= 6, (g, d)
            if g in S["ds"]:
                x = S["ds"][g]; now = rep * 192 + g
                if x[0] == "K":
                    assert g < cfg.bY - 4
                    for u in range(2): pool[(kslot(x[1], x[2]), u)] = (("K", x[1], x[2], rep), now)
                elif x[0] == "K0":
                    assert g > cfg.bX
                    for u in range(2): pool[(kslot(0, x[2]), u)] = (("K", 0, x[2], rep + 1), now)
                else:
                    assert cfg.bY < g < cfg.bX - 4
                    pool[(vslot(x[1], x[2]), x[3])] = (("V", x[1], x[2], x[3], rep), now)

def m0K(slot, n): return KS[slot] + n * BLK - (n & 3) * 1024
def m0V(slot, n):
    r1, r0, gg = n >> 2, (n >> 1) & 1, n & 1
    return slot * SLOT + (8 * gg + 2 * (2 * r1 + r0)) * BLK - (4 * r0 + gg) * 512
def dmaK_ins(n): return f"buffer_load_dwordx4 {vDK}, {sK}, {sKoff} offen offset:{(n&3)*1024}{POL['kv']} lds"
def dmaV_ins(n):
    r0, gg = (n >> 1) & 1, n & 1
    return f"buffer_load_dwordx4 {vDV}, {sV}, {sVoff} offen offset:{(4*r0+gg)*512}{POL['kv']} lds"

def pf_ins(cfg, par):
    srd, off = (sQ, "s59") if par == 0 else ("s[44:47]", "s51")
    return f"buffer_load_dword {vPF}, v254, {srd}, {off} offen" + ((' ' + cfg.pfpol) if cfg.pfpol else '')

class Emit:
    def __init__(self, cfg):
        self.cfg = cfg
        self.L = []
        self.dsq = []
        self.cov = 0
        self.inloop = False
    def o(self, s):
        if getattr(self, 'infinal', False) and self.cfg.abl:
            a = self.cfg.abl
            if 'S' in a and s.startswith("buffer_store"): return
            if '0' in a and s.startswith("buffer_store") and "offset:0 " in s: return
            if 'W' in a and s.startswith("ds_write"): return
            if 'R' in a and s.startswith("ds_read_b128 v"): return
            if 'A' in a and s.startswith("v_accvgpr_read"): return
            if 'M' in a and s.startswith("v_mul_f32"): return
        if self.inloop and self.cfg.abl:
            a = self.cfg.abl
            if 'b' in a and s.startswith("s_barrier"): return
            if 'd' in a and s.startswith("buffer_load"): return
            if 'r' in a and s.startswith("ds_read"): return
        self.L.append("    " + s)
    def lab(self, s): self.L.append(s + ":")

    def frag_tags(self, g):
        d = mfma_desc(g % 192)
        if d[0] == "QK":
            return [("K", d[1], d[3])]
        return [("V", d[1], d[3], 0), ("V", d[1], d[3], 1)]

    def need_wait(self, tags, now):
        idx = -1
        for i, (tg, gp) in enumerate(self.dsq):
            if tg in tags: idx = max(idx, i)
        if idx < self.cov: return None
        j = idx
        while j + 1 < len(self.dsq) and self.dsq[j + 1][1] <= now - self.cfg.lat: j += 1
        n = len(self.dsq) - 1 - j
        if n > 15:
            n = 15; j = len(self.dsq) - 1 - n
        self.cov = j + 1
        return n

    def mfma(self, g, par):
        d = mfma_desc(g)
        if d[0] == "QK":
            _, ks, qt, t, first = d
            cc = NMr(qt) if first else Sr(ks, qt)
            self.o(f"v_mfma_f32_16x16x32_bf16 {Sr(ks,qt)}, {Fr(kslot(ks,t))}, {Qr(qt,t)}, {cc}")
        else:
            _, dt, qt, kk = d
            if '4' in self.cfg.abl and self.inloop:
                dp, rem = divmod(g - 96, 12); c, p = divmod(rem, 4)
                qt = c if dp % 2 == 0 else 2 - c
                if (c % 2 == 0) != (dp % 2 == 0): p = 3 - p
                acc = Or(dp + 8 * par, qt)
                self.o(f"v_mfma_f32_16x16x32_bf16 {acc}, {Fr((4 * dp + p) % 16)}, {Pr(p >> 1, p & 1, qt)}, {acc}")
                return
            self.o(f"v_mfma_f32_16x16x32_bf16 {Or(dt,qt)}, {Pr(par,kk,qt)}, {Fr(vslot(dt,kk))}, {Or(dt,qt)}")

    def dsop(self, x, g, par):
        if x[0] == "K":
            _, ks, t = x
            off = KS[par ^ 1] + (16 * (ks >> 1) + (ks & 1)) * BLK + t * 64
            self.o(f"ds_read_b128 {Fr(kslot(ks,t))}, {vK} offset:{off}")
            self.dsq.append((("K", ks, t), g))
        elif x[0] == "K0":
            _, ks, t = x
            self.o(f"ds_read_b128 {Fr(kslot(0,t))}, {vK} offset:{KS[par] + t * 64}")
            self.dsq.append((("K", 0, t), g))
        else:
            _, dt, kk, u = x
            off = par * SLOT + 16 * kk * BLK + u * 512 + dt * 32
            self.o(f"ds_read_b64_tr_b16 {Fh(vslot(dt,kk), u)}, {vV} offset:{off}")
            self.dsq.append((("V", dt, kk, u), g))

    def smop(self, x, par, thr, pbuf=None):
        if pbuf is None: pbuf = par ^ 1
        if x[0] == "exp":
            ks, qt, r = elem_of(x[1])
            self.o(f"v_exp_f32 v{ET0 + x[1] % NET}, {Se(ks,qt,r)}")
        elif x[0] == "add":
            ks, qt, r = elem_of(x[1])
            src = Lr(par ^ 1, qt) if (ks == 0 and r == 0) else Lr(par, qt)
            self.o(f"v_add_f32 {Lr(par,qt)}, {src}, v{ET0 + x[1] % NET}")
        elif x[0] == "cvt":
            i = 2 * x[1]
            ks, qt, r = elem_of(i)
            self.o(f"v_cvt_pk_bf16_f32 {Pe3(pbuf, ks>>1, qt, 2*(ks&1) + r//2)}, v{ET0 + i % NET}, v{ET0 + (i+1) % NET}")
        elif x[0] == "max3":
            self.o(f"v_max3_f32 {vCHK}, {Lr(par,0)}, {Lr(par,1)}, {Lr(par,2)}")
        elif x[0] == "cmp":
            self.o(f"v_cmp_{'nge' if par == 0 else 'lt'}_f32 vcc, {thr}, {vCHK}")

    def body(self, S, par, first=False):
        for g in range(192):
            if first and g >= 96 and g % 2 == 0:
                _, dt, qt, kk = mfma_desc(g)
                if self.cfg.obias:
                    for r in range(4):
                        self.o(f"v_accvgpr_write_b32 {Oe(dt,qt,r)}, s65" if Ob(dt,qt)[0] == "a" else f"v_mov_b32 {Oe(dt,qt,r)}, s65")
                    self.o("s_nop 1")
                    self.mfma(g, par)
                else:
                    self.o(f"v_mfma_f32_16x16x32_bf16 {Or(dt,qt)}, {Pr(par,kk,qt)}, {Fr(vslot(dt,kk))}, 0")
            else: self.mfma(g, par)
            sc = list(S["scal"][g])
            if not any(x[0] == "bwait" for x in sc):
                n = self.need_wait(self.frag_tags(g + 1), g)
                if n is not None: self.o(f"s_waitcnt lgkmcnt({n})")
                if g == 190:
                    n = self.need_wait(self.frag_tags(g + 2), g)
                    if n is not None: self.o(f"s_waitcnt lgkmcnt({n})")
            for x in sc:
                if x[0] == "m0":
                    kind, n = x[1][:2]
                    if kind == "DV": self.o(f"s_add_u32 m0, {sVM}, {m0V(x[1][2] if first else par if g > 96 else par ^ 1, n)}")
                    else: self.o(f"s_add_u32 m0, {sKM}, {m0K(x[1][2] if first else par ^ 1, n)}")
                elif x[0] == "soff":
                    kind, n = x[1][:2]
                    inc = 4096 if n == 3 else 32768 - 4096
                    r = sVoff if kind == "DV" else sKoff
                    self.o(f"s_add_u32 {r}, {r}, {inc}")
                elif x[0] == "pfoff":
                    r = "s59" if par == 0 else "s51"
                    self.o(f"s_sub_u32 {r}, {r}, {8192 << self.cfg.pfsh}")
                elif x[0] == "pfclamp":
                    r = "s59" if par == 0 else "s51"
                    assert len(sc) == 1 and len(S["scal"][g - 1]) == 1
                    self.o(f"s_cselect_b32 {r}, 0x40000000, {r}")
                elif x[0] == "bwait":
                    nv = sum(1 for gg in S["dma"] if gg < g) if (first and g == self.cfg.bY) else 16
                    self.o(f"s_waitcnt vmcnt({nv}) lgkmcnt(0)")
                    self.dsq = []; self.cov = 0
                elif x[0] == "barrier":
                    self.o("s_barrier")
                elif x[0] == "loopcnt":
                    if par == 0: self.o(f"s_sub_u32 {sCnt}, {sCnt}, 1")
                elif x[0] == "loopcmp":
                    if par == 0: self.o(f"s_bitcmp1_b32 s57, {sCnt}")
                elif x[0] == "loopsel":
                    if par == 0: self.o(f"s_cselect_b32 {sThrC}, -1.0, {'-1.0' if self.cfg.istamp else sThr}")
            if g in S["ds"]: self.dsop(S["ds"][g], g, par)
            if g in S["dma"]:
                kind, n = S["dma"][g][:2]
                self.o(pf_ins(self.cfg, par) if kind == "PF" else dmaV_ins(n) if kind == "DV" else dmaK_ins(n))
            for x in S["vec"][g]:
                if 'a' in self.cfg.abl and x[0] == "add" and x[1] not in (0, 4, 8): continue
                self.smop(x, par, sThrC if par == 0 else sThr)
            if 'm' in self.cfg.abl and g == 184:
                for qt in range(3):
                    self.o(f"v_smfmac_f32_16x16x64_bf16 v[{232+4*qt}:{235+4*qt}], v[228:231], v[{P0+24*(par^1)+8*qt}:{P0+24*(par^1)+8*qt+7}], v244")
            if 'M' in self.cfg.abl and g == 184:
                for qt in range(3):
                    for kk in range(2):
                        self.o(f"v_mfma_f32_16x16x32_bf16 v[{232+4*qt}:{235+4*qt}], v[228:231], {Pr(par^1,kk,qt)}, v[{232+4*qt}:{235+4*qt}]")
            if 'n' in self.cfg.abl and g % 32 == 20:
                self.o("s_nop 15"); self.o("s_nop 15")
            if 'e' in self.cfg.abl:
                used = sum(2 if x[0] == "exp" else 1 for x in S["vec"][g])
                for k in range(S["cap"][g] - used):
                    self.o(f"v_fma_f32 v{230 + (g + k) % 8}, v{S0 + (g * 5 + k) % 48}, {sC}, v{144 + g % 48}")
        self.dsq = [(tg, gp - 192) for tg, gp in self.dsq]

    def xlane(self, op, v, t):
        self.o(f"v_mov_b32 {t}, {v}")
        self.o("s_nop 1")
        self.o(f"v_permlane32_swap_b32 {v}, {t}")
        self.o("s_nop 1")
        self.o(f"{op} {v}, {v}, {t}")
        self.o(f"v_mov_b32 {t}, {v}")
        self.o("s_nop 1")
        self.o(f"v_permlane16_swap_b32 {v}, {t}")
        self.o("s_nop 1")
        self.o(f"{op} {v}, {v}, {t}")

    def slow(self, name, par, pcur, pend):
        self.lab(name)
        self.o("s_nop 15")
        fr = [f"v{ET0+qt}" for qt in range(3)]
        nr = [f"v{ET0+3+qt}" for qt in range(3)]
        wk = [f"v{ET0+6}", f"v{ET0+7}", "v252", "v255"]
        tt, tu = wk[0], wk[1]
        for qt in range(3):
            xs = [Se(ks, qt, r) for ks in range(4) for r in range(4)]
            n = nr[qt]
            self.o(f"v_log_f32 {tt}, {Lr(par^1,qt)}")
            self.o(f"v_max3_f32 {n}, {xs[0]}, {xs[1]}, {xs[2]}")
            for i in range(3, 15, 2): self.o(f"v_max3_f32 {n}, {n}, {xs[i]}, {xs[i+1]}")
            self.o(f"v_max3_f32 {n}, {n}, {xs[15]}, {tt}")
            self.xlane("v_max_f32", n, tu)
            self.o(f"v_max_f32 {n}, 0, {n}")
            self.o(f"v_ceil_f32 {n}, {n}")
            for r in range(4): self.o(f"v_sub_f32 {NMe(qt,r)}, {NMe(qt,r)}, {n}")
            self.o(f"v_min_f32 {tt}, 0x43800000, {n}")
            self.o(f"v_cvt_i32_f32 {tt}, {tt}")
            self.o(f"v_sub_u32 {tt}, 0, {tt}")
            self.o(f"v_ldexp_f32 {fr[qt]}, 1.0, {tt}")
        tb_ = Pb(pcur)
        self.o(f"v_mbcnt_lo_u32_b32 {tt}, -1, 0")
        self.o(f"v_mbcnt_hi_u32_b32 {tt}, -1, {tt}")
        self.o(f"v_and_b32 {tt}, 48, {tt}")
        for qt in range(3):
            for r in range(4): self.o(f"ds_bpermute_b32 v{tb_+4*qt+r}, {tt}, {fr[qt]} offset:{4*r}")
        self.o("s_waitcnt lgkmcnt(0)")
        for dt in range(16):
            for qt in range(3):
                if Ob(dt, qt)[0] == "a":
                    for r in range(4): self.o(f"v_accvgpr_read_b32 {wk[r]}, {Oe(dt,qt,r)}")
                    for r in range(4): self.o(f"v_mul_f32 {wk[r]}, {wk[r]}, v{tb_+4*qt+r}")
                    for r in range(4): self.o(f"v_accvgpr_write_b32 {Oe(dt,qt,r)}, {wk[r]}")
                else:
                    for r in range(4): self.o(f"v_mul_f32 {Oe(dt,qt,r)}, {Oe(dt,qt,r)}, v{tb_+4*qt+r}")
        for buf in pend:
            for kk in range(2):
                for qt in range(3):
                    for j in range(4):
                        p = Pe3(buf, kk, qt, j)
                        self.o(f"v_lshlrev_b32 {tt}, 16, {p}")
                        self.o(f"v_and_b32 {tu}, 0xffff0000, {p}")
                        self.o(f"v_mul_f32 {tt}, {tt}, {fr[qt]}")
                        self.o(f"v_mul_f32 {tu}, {tu}, {fr[qt]}")
                        self.o(f"v_cvt_pk_bf16_f32 {p}, {tt}, {tu}")
        for qt in range(3):
            self.o(f"v_mul_f32 {Lr(par,qt)}, {Lr(par^1,qt)}, {fr[qt]}")
            for ks in range(4):
                for r in range(4): self.o(f"v_sub_f32 {wk[r]}, {Se(ks,qt,r)}, {nr[qt]}")
                for r in range(4): self.o(f"v_exp_f32 {wk[r]}, {wk[r]}")
                self.o("s_nop 0")
                for r in range(4): self.o(f"v_add_f32 {Lr(par,qt)}, {Lr(par,qt)}, {wk[r]}")
                j = 2 * (ks & 1)
                self.o(f"v_cvt_pk_bf16_f32 {Pe3(pcur,ks>>1,qt,j)}, {wk[0]}, {wk[1]}")
                self.o(f"v_cvt_pk_bf16_f32 {Pe3(pcur,ks>>1,qt,j+1)}, {wk[2]}, {wk[3]}")
        self.o("s_nop 3")
        self.o(f"s_setpc_b64 {sRet}")

    def final(self, S):
        cfg = self.cfg; o = self.o
        PBUF = [1, 0, 2]
        SB = 120
        M = []
        def dtmajor(dts, parts):
            qs = [0, 1, 2]; ps = list(parts)
            for dt in dts:
                for qt in qs:
                    for (tile, kk) in ps: M.append(("PV", dt, qt, tile, kk))
                    ps.reverse()
                qs.reverse()
        def qtmajor(dts, parts):
            dts = list(dts); ps = list(parts)
            for qt in range(3):
                for dt in dts:
                    for (tile, kk) in ps: M.append(("PV", dt, qt, tile, kk))
                    ps.reverse()
                dts.reverse()
        T = lambda *ts: [(t, kk) for t in ts for kk in range(2)]
        for sb in range(2):
            M += [("QK", sb, g) for g in range(96)]
            dtmajor(range(4), T(sb))
        NC = len(M)
        qtmajor(range(4), T(2))
        for gi in (1, 2):
            dtmajor(range(4 * gi, 4 * gi + 4), T(0))
            qtmajor(range(4 * gi, 4 * gi + 4), T(1, 2))
        qtmajor(range(12, 16), T(0, 1, 2))
        N = len(M)
        def frag(m):
            if m[0] == "QK":
                d = mfma_desc(m[2]); return ("K", m[1], d[1], d[3])
            return ("V", m[1], m[3], m[4])
        first = {}; lastu = {}; lastO = {}
        for i, m in enumerate(M):
            f = frag(m); first.setdefault(f, i); lastu[f] = i
            if m[0] == "PV": lastO[(m[1], m[2])] = i
        slot = {}; holder = {}
        fixed = {}
        for t in range(8):
            slot[("K", 0, 0, t)] = kslot(0, t); holder[kslot(0, t)] = ("K", 0, 0, t)
        for sb in range(2):
            for g, x in S["ds"].items():
                if x[0] == "K": fixed[sb * SB + g] = (("K", sb, x[1], x[2]), None, kslot(x[1], x[2]) ^ (8 * sb))
            vf = sorted((f for f in first if f[0] == "V" and sb * SB <= first[f] < (sb + 1) * SB), key=lambda f: first[f])
            for n in range(16):
                fixed[sb * SB + 72 + (3 * n) // 2] = (vf[n >> 1], n & 1, (n >> 1) ^ (8 * sb))
        for p in range(8): fixed[96 + 3 * p - (1 if p > 5 else 0)] = (("K", 1, 0, p), None, kslot(0, p) ^ 8)
        reads = [(f, u) for f in sorted((f for f in first if first[f] >= NC), key=lambda f: first[f]) for u in range(2)]
        def take(f, sl, g):
            if f not in slot:
                old = holder.get(sl)
                assert old is None or lastu[old] <= g, (f, sl, g, old)
                assert sl >= 0 or g >= SB + 95
                slot[f] = sl; holder[sl] = f
            assert first[f] - g >= 6, (f, g)
        def rd(f, u, g):
            if f[0] == "K":
                _, sb, ks, t = f
                o(f"ds_read_b128 {Fr(slot[f])}, {vK} offset:{KS[sb] + (16*(ks>>1) + (ks&1))*BLK + t*64}")
                self.dsq.append(((f, None), g))
            else:
                _, dt, tile, kk = f
                ad, base = [(vV, SLOT), (vV, 0), (vV2, KS[0])][tile]
                o(f"ds_read_b64_tr_b16 {Fh(slot[f], u)}, {ad} offset:{base + 16*kk*BLK + u*512 + dt*32}")
                self.dsq.append(((f, u), g))
        def tags(i):
            f = frag(M[i])
            if f[0] == "K": return [(f, None)] + ([("K", 0, f[3])] if f[1] == 0 and f[2] == 0 else [])
            return [(f, 0), (f, 1)]
        dma = {}
        ntail = sum(1 for g in cfg.dmaA if g > 96)
        for n, g in zip(range(ntail, 8), cfg.dma30):
            assert g not in fixed
            dma[g] = (n, m0V(0, n))
        for n, g in enumerate(cfg.dma31):
            assert g not in fixed and g > cfg.bY + 1
            dma[g] = (n, (m0V(0, n) - VS[0] + KS[0]) & 0xffffffff)
        pre = []; sv = self.L; self.L = pre
        for sw in ("v_permlane32_swap_b32", "v_permlane16_swap_b32"):
            for qt in range(3): o(f"v_mov_b32 v{ET0+qt}, {Lr(0,qt)}")
            for qt in range(3): o(f"{sw} {Lr(0,qt)}, v{ET0+qt}")
            for qt in range(3): o(f"v_add_f32 {Lr(0,qt)}, {Lr(0,qt)}, v{ET0+qt}")
        for qt in range(3): o(f"v_rcp_f32 {Lr(1,qt)}, {Lr(0,qt)}")
        o(f"v_lshrrev_b32 {vBP}, 7, {vDK}")
        o(f"v_lshlrev_b32 {vBP}, 2, {vBP}")
        self.L = sv
        vq = [("txt", t.strip(), None) for t in pre]
        RN = lambda qt, j: f"v{208 + 2*qt + j}"
        lq = []
        for qt in range(3):
            for j in range(2):
                lq.append((f"ds_bpermute_b32 {RN(qt,j)}, {vBP}, {Lr(1,qt)} offset:{32*j}", "pre", ("B", qt, j), []))
        tb = 0; ts = 0
        for (dt, qt) in sorted(lastO, key=lambda k: lastO[k]):
            gi, dd = divmod(dt, 4)
            rdy = lastO[(dt, qt)]
            tb += 1
            for h in range(2):
                o0 = 2 * h * (OROW // 4) + dd * 16
                lq.append((f"ds_write2_b32 {vOW}, {Oe(dt,qt,2*h)}, {Oe(dt,qt,2*h+1)} offset0:{o0} offset1:{o0 + OROW // 4}", rdy, ("W", dt, qt, h), []))
            if tb % 4 == 0:
                for j in range(2):
                    b = (64 + (ts % 6) * 12) if True else 0; ts += 1
                    tag = ("R", gi, qt, j)
                    if cfg.pkepi:
                        rp = f"v[{208 + 2*qt}:{209 + 2*qt}]"
                        sel = "op_sel_hi:[1,0]" if j == 0 else "op_sel:[0,1]"
                        rel = [("pk", [f"v_pk_mul_f32 v[{b+2*i}:{b+2*i+1}], v[{b+2*i}:{b+2*i+1}], {rp} {sel}" for i in range(4)], tag)]
                    else:
                        rel = [("txt", f"v_mul_f32 v{b+i}, v{b+i}, {RN(qt,j)}", tag) for i in range(8)]
                    rel += [("txt", f"v_cvt_pk_bf16_f32 v{b+8+i}, v{b+2*i}, v{b+2*i+1}", tag) for i in range(4)]
                    so = ["0", "s48", "s49"][qt]
                    rel += [("st", f"buffer_store_dwordx4 v[{b+8}:{b+11}], {vOG if j == 0 else vOG2}, {sO}, {so} offen offset:{gi*128}{POL['o']}", tag)]
                    lq.append((f"ds_read_b128 v[{b}:{b+3}], {vOR} offset:{j*8*OROW}", rdy, ("R0", gi, qt, j), []))
                    lq.append((f"ds_read_b128 v[{b+4}:{b+7}], {vOR} offset:{j*8*OROW + 16}", rdy, tag, rel))
        bp = lq[:6]; lq = lq[6:14] + bp[:2] + lq[14:18] + bp[2:4] + lq[18:30] + bp[4:] + lq[30:]
        npre = len(vq)
        issued = {}
        def emit_l(now):
            t, rdy, tag, rel = lq.pop(0)
            o(t); self.dsq.append((tag, now)); issued[tag] = now
            vq.extend(rel)
            return 3 if tag[0] == "W" else 1
        def emit_v(now):
            kind, t, tag = vq.pop(0)
            if tag is not None:
                idx = max(i for i, (tg, gp) in enumerate(self.dsq) if tg == tag)
                if idx >= self.cov:
                    n = min(15, len(self.dsq) - 1 - idx); self.cov = len(self.dsq) - n
                    o(f"s_waitcnt lgkmcnt({n})")
            if kind == "pk":
                if cfg.pkdbg & 1: o("s_nop 7")
                for x in t: o(x)
                if cfg.pkdbg & 2: o("s_nop 7")
                return 4
            o(t)
            return 4 if kind == "st" else 1
        e = {}
        def sm_step(sb, g, c):
            par = sb ^ 1; pb = PBUF[sb + 1]
            avail = e["ne"] < 48 and g >= 8 * (e["ne"] // 4) + 7 + 5
            can_exp = (c >= 2 and avail and e["ne"] - 2 * e["nc"] < NET and e["ne"] - e["na"] < NET)
            can_add = e["na"] < e["ne"] and e["expgap"][e["na"]] != g
            can_cvt = 2 * e["nc"] + 1 < e["ne"] and e["expgap"][2 * e["nc"] + 1] != g
            if can_exp:
                self.smop(("exp", e["ne"]), par, sThr, pb); e["expgap"][e["ne"]] = g; e["ne"] += 1; return 2
            if can_add and (e["na"] <= 2 * e["nc"] or not can_cvt):
                self.smop(("add", e["na"]), par, sThr, pb); e["na"] += 1; return 1
            if can_cvt:
                self.smop(("cvt", e["nc"]), par, sThr, pb); e["nc"] += 1; return 1
            if e["na"] == 48 and e["nc"] == 24 and e["chk"] == 0:
                self.smop(("max3",), par, sThr, pb); e["chk"] = 1; return 1
            if e["chk"] == 1:
                o(f"v_cmp_lt_f32 vcc, {sThr}, {vCHK}"); e["chk"] = 2; return 1
            return 0
        at = {-1: 0}
        nread = 0; nv = 0; pkwait = 0
        for g in range(N):
            m = M[g]
            sb, gl = divmod(g, SB)
            if g < NC and gl == 0: e.update(ne=0, na=0, nc=0, chk=0, expgap={})
            at[g] = len(self.L)
            f = frag(m)
            assert holder[slot[f]] == f
            if m[0] == "QK":
                _, ks, qt, t, fst = mfma_desc(m[2])
                o(f"v_mfma_f32_16x16x32_bf16 {Sr(ks,qt)}, {Fr(slot[f])}, {Qr(qt,t)}, {NMr(qt) if fst else Sr(ks,qt)}")
            else:
                _, dt, qt, tile, kk = m
                o(f"v_mfma_f32_16x16x32_bf16 {Or(dt,qt)}, {Pr3(PBUF[tile],kk,qt)}, {Fr(slot[f])}, {Or(dt,qt)}")
            c = 2
            isb = g < NC and gl == cfg.bY
            if isb:
                o(f"s_waitcnt vmcnt({8 if sb == 0 else 0}) lgkmcnt(0)"); self.dsq = []; self.cov = 0
            if g + 1 < N and not isb:
                n = self.need_wait(tags(g + 1), g)
                if n is not None: o(f"s_waitcnt lgkmcnt({n})")
            if g < NC and gl == cfg.bY + 1:
                o("s_barrier"); c -= 1
            if g + 1 in dma:
                o(f"s_add_u32 m0, {sVM}, {dma[g + 1][1]}"); c -= 1
            if g - 1 in dma and dma[g - 1][0] in (3, 7):
                o(f"s_add_u32 {sVoff}, {sVoff}, {4096 if dma[g - 1][0] == 3 else 32768 - 4096}")
            if g < NC and gl == SB - 1:
                gg = gl + 1
                while e["chk"] < 2:
                    prev = self.L[-1].split()
                    k = sm_step(sb, gg, 2); gg += 1
                    cur = self.L[-1].replace(",", " ").split()
                    if prev[0] == "v_exp_f32" and cur[0] != "v_exp_f32" and prev[1].rstrip(",") in cur[2:]:
                        self.L.insert(len(self.L) - 1, "    s_nop 0")
                o("s_nop 4")
                o(f"s_cbranch_vccnz L_trf{sb}")
                self.lab(f"L_nosf{sb}")
                continue
            dsdone = False
            if g in fixed:
                f2, u, sl = fixed[g]
                take(f2, sl, g); rd(f2, u, g); dsdone = True
            elif g >= SB + 96 and nread < len(reads):
                f2, u = reads[nread]
                ok = first[f2] - g <= cfg.flead and not (g < NC and g % 3 == 2)
                if ok and f2 not in slot:
                    fr_ = [sl for sl in list(range(16)) + list(range(-16, 0)) if sl not in holder or lastu[holder[sl]] <= g]
                    if fr_: take(f2, fr_[0], g)
                    else: ok = False
                if ok:
                    assert first[f2] - g >= 6, (f2, g)
                    rd(f2, u, g); nread += 1; dsdone = True
            if dsdone: c -= 1
            if g in dma:
                o(dmaV_ins(dma[g][0])); c = 0
            if g < NC:
                while c > 0 and e["chk"] < 2:
                    k = sm_step(sb, gl, c)
                    if k == 0: break
                    c -= k
            else:
                k = 1 if dsdone else 0
                fast = g - NC < cfg.fast0
                budget = cfg.epi_ratio + (1 if fast else 0)
                def vready(): return bool(vq) and (vq[0][2] is None or g - issued[vq[0][2]] >= 4)
                def lready():
                    if not lq: return False
                    rdy = lq[0][1]
                    if rdy == "pre": return nv >= npre
                    if lq[0][2][0] == "R0" and len(vq) > 3 * (6 if cfg.pkepi else 13): return False
                    return rdy <= g and len(self.L) - at[rdy] > 9
                nl = 0
                if vready() and vq[0][0] == "st":
                    k += emit_v(g); nv += 1
                elif lready() and (not vready() or len(vq) < cfg.vqmax or lq[0][2][0] != "W"):
                    k += emit_l(g); nl = 1
                    if lready() and (lq[0][2][0] == "R" or (not vready() and k < budget)): k += emit_l(g)
                first_v = True
                while vready() and (k < budget or (first_v and (nl or dsdone))) and vq[0][0] == "txt":
                    k += emit_v(g); nv += 1; first_v = False
                if vready() and vq[0][0] == "pk":
                    if k >= cfg.pkmin or pkwait >= 2:
                        k += emit_v(g); nv += 1; pkwait = 0
                    else: pkwait += 1
        assert nread == len(reads)
        o("s_nop 7")
        now = N + 10
        while lq or vq:
            now += 1
            if lq and not (lq[0][2][0] == "R0" and len(vq) > 3 * (6 if cfg.pkepi else 13)): emit_l(now)
            for _ in range(2 if lq else 100):
                if vq and (not lq or vq[0][2] is None or now - issued[vq[0][2]] >= 4): emit_v(now)

def gen(cfg):
    POL['kv'] = (' ' + cfg.kvpol) if cfg.kvpol else ''
    POL['q'] = (' ' + cfg.qpol) if cfg.qpol else ''
    POL['o'] = (' ' + cfg.opol) if cfg.opol else ''
    SNAKE[0] = cfg.snake
    shifts = {1: [0], 2: [0, 2], 4: [0, 1, 2, 3]}[cfg.ncopy]
    SS = [build_schedule(cfg, sh) for sh in shifts]
    for S in SS: verify_frags(S, cfg)
    E = Emit(cfg)
    o = E.o
    E.L.append(f"; @launch grid=(256,1,1) block=(256,1,1) lds={LDS_BYTES}")
    E.L.append('.amdgcn_target "amdgcn-amd-amdhsa--gfx950"')
    E.L.append(".text")
    E.L.append(f".globl {NAME}")
    E.L.append(".p2align 8")
    E.L.append(f".type {NAME},@function")
    E.lab(NAME)
    o("s_cmp_ge_u32 s2, 256")
    o("s_cbranch_scc1 L_end")
    o("s_load_dwordx4 s[32:35], s[0:1], 0")
    o("s_load_dwordx4 s[36:39], s[0:1], 16")
    if cfg.stamp:
        o("s_load_dwordx2 s[60:61], s[0:1], 40")
        o("s_memtime s[64:65]")
        o("s_memrealtime s[66:67]")
    npf = 0
    if cfg.prefetch_code:
        o("s_getpc_b64 s[46:47]")
        E.lab("L_pc")
        o("s_bfe_u32 s40, s2, 0x30003")
        o("s_lshl_b32 s40, s40, 12")
        o("v_lshl_add_u32 v254, v0, 4, s40")
        o("v_min_u32 v255, L_codeend - L_pc - 4, v254")
        o(f"global_load_dword {vPF}, v255, s[46:47]")
    o("s_and_b32 s40, s2, 7")
    o("s_lshr_b32 s41, s2, 4")
    o("s_lshl_b32 s41, s41, 3")
    o("s_or_b32 s40, s40, s41")
    o("s_lshr_b32 s41, s2, 3")
    o("s_and_b32 s41, s41, 1")
    o("s_lshl_b32 s42, s40, 20")
    if 'h' in cfg.abl:
        o("s_and_b32 s42, s2, 7"); o("s_lshl_b32 s42, s42, 20")
    o("s_lshl_b32 s43, s40, 1")
    o("s_add_u32 s43, s43, s41")
    o("s_mul_i32 s43, s43, 98304")
    o("v_lshrrev_b32 v250, 6, v0")
    o("v_and_b32 v251, 63, v0")
    o("v_readfirstlane_b32 s20, v250")
    o(f"v_lshlrev_b32 {vDK}, 4, v251")
    o("s_mov_b32 s6, 0x100000"); o("s_mov_b32 s7, 0x20000")
    o("s_mov_b32 s14, 98304"); o("s_mov_b32 s15, 0x20000")
    o(f"s_mul_i32 {sKM}, s20, {8*BLK}")
    o(f"s_lshl_b32 {sKoff}, s20, 13")
    o("s_mul_i32 s50, s20, 24576")
    o("s_lshr_b32 s44, s20, 1")
    o("s_lshl_b32 s44, s44, 4")
    o("s_and_b32 s45, s20, 1")
    o("s_add_u32 s44, s44, s45")
    o(f"s_mul_i32 s44, s44, {BLK}")
    o(f"s_add_u32 {sVM}, s44, {VS[0]}")
    o(f"s_mov_b32 m0, {sKM}")
    o("s_waitcnt lgkmcnt(0)")
    o("s_add_u32 s4, s34, s42"); o("s_addc_u32 s5, s35, 0")
    if cfg.pstamp == 2: o("s_memtime s[86:87]")
    def ps(k):
        if cfg.pstamp == 2: return
        if cfg.pstamp: o(f"s_memtime s[{86+2*k}:{87+2*k}]")
    def burst(srd, soff, d1, d2, pol):
        for n in range(8):
            o(f"buffer_load_dwordx4 {vDK}, {srd}, {soff} offen offset:{(n&3)*1024}{pol} lds")
            if n < 7:
                o(f"s_add_u32 m0, m0, {d2 if n == 3 else d1}")
                o(f"s_add_u32 {soff}, {soff}, 4096" if n == 3 else "s_nop 0")
    QD = (2 * BLK - 1024, 2 * BLK + 3072); KD = (BLK - 1024, BLK + 3072)
    o("s_add_u32 s12, s32, s43"); o("s_addc_u32 s13, s33, 0")
    if cfg.pretouch:
        if 'q' in cfg.pretouch: o(f"buffer_load_dword {vPF}, off, {sQ}, s50{POL['q']}")
        if 'v' in cfg.pretouch:
            o("s_add_u32 s8, s36, s42"); o("s_addc_u32 s9, s37, 0"); o("s_mov_b32 s10, 0x100000"); o("s_mov_b32 s11, 0x20000")
            o(f"buffer_load_dword {vPF}, off, {sV}, 0{POL['kv']}")
        if 'o' in cfg.pretouch:
            o("s_add_u32 s16, s38, s43"); o("s_addc_u32 s17, s39, 0"); o("s_mov_b32 s18, 98304"); o("s_mov_b32 s19, 0x20000")
            o(f"buffer_load_dword {vPF}, off, {sO}, 0{POL['kv']}")
    burst(sK, sKoff, KD[0], KD[1], POL['kv'])
    o(f"s_add_u32 m0, {sVM}, {SLOT}")
    if cfg.stag & 1:
        o("s_bitcmp1_b32 s2, 0")
        o(f"s_cbranch_scc{cfg.stagpol} L_sg0")
        o("s_waitcnt vmcnt(0)")
        E.lab("L_sg0")
    if cfg.pstamp == 2: o("s_memtime s[88:89]")
    o("s_barrier")
    if cfg.pstamp == 2: o("s_memtime s[90:91]")
    burst(sQ, "s50", QD[0], QD[1], POL['q'])
    if cfg.pstamp == 2: o("s_memtime s[92:93]")
    o("s_add_u32 s50, s50, 4096")
    o("s_add_u32 s8, s36, s42"); o("s_addc_u32 s9, s37, 0"); o("s_mov_b32 s10, 0x100000"); o("s_mov_b32 s11, 0x20000")
    o("s_add_u32 s16, s38, s43"); o("s_addc_u32 s17, s39, 0"); o("s_mov_b32 s18, 98304"); o("s_mov_b32 s19, 0x20000")
    o("s_mov_b32 s48, 8192"); o("s_mov_b32 s49, 16384")
    o("v_and_b32 v252, 15, v251")
    o("v_lshrrev_b32 v241, 4, v251")
    o("v_lshrrev_b32 v254, 5, v251")
    o("v_and_b32 v255, 31, v251")
    o("v_lshlrev_b32 v255, 4, v255")
    o(f"v_lshl_add_u32 {vDV}, v254, 10, v255")
    o(f"s_lshl_b32 {sVoff}, s20, 13")
    o("v_and_b32 v254, 3, v252")
    o("v_lshrrev_b32 v255, 3, v252")
    o("v_lshl_or_b32 v247, v255, 2, v254")
    o("v_bfe_u32 v246, v252, 2, 1")
    o(f"v_mul_u32_u24 v254, {2*BLK}, v247")
    o("v_lshl_add_u32 v254, v246, 9, v254")
    o(f"v_lshl_add_u32 {vK}, v241, 4, v254")
    o(f"v_add_u32 v248, {sVM}, {vK}")
    o(f"v_add_u32 v248, {SLOT}, v248")
    o("v_and_b32 v246, 1, v241")
    o("v_lshrrev_b32 v245, 2, v252")
    o("v_lshrrev_b32 v244, 1, v241")
    o("v_and_b32 v243, 3, v252")
    o("v_lshl_add_u32 v254, v245, 1, v244")
    o("v_lshl_add_u32 v254, v246, 3, v254")
    o(f"v_mul_u32_u24 v254, {BLK}, v254")
    o("v_lshl_add_u32 v254, v243, 3, v254")
    o(f"v_add_u32 {vV}, {VS[0]}, v254")
    o(f"v_mov_b32 {vV2}, v254")
    o(f"v_mul_u32_u24 v254, {OWAVE}, v250")
    o(f"v_add_u32 v254, {OBASE}, v254")
    o(f"v_mul_u32_u24 v255, {4*OROW}, v241")
    o(f"v_add_u32 {vOW}, v254, v255")
    o(f"v_lshl_add_u32 {vOW}, v252, 2, {vOW}")
    o("v_lshrrev_b32 v255, 3, v251")
    o(f"v_mul_u32_u24 {vOR}, {OROW}, v255")
    o(f"v_add_u32 {vOR}, {vOR}, v254")
    o("v_and_b32 v254, 7, v251")
    o(f"v_lshl_add_u32 {vOR}, v254, 5, {vOR}")
    o("v_and_b32 v247, 3, v255")
    o("v_lshrrev_b32 v255, 2, v255")
    o("v_lshl_add_u32 v255, v247, 1, v255")
    o(f"v_mul_u32_u24 {vOG}, 48, v250")
    o(f"v_add_u32 {vOG}, {vOG}, v255")
    o(f"v_lshlrev_b32 {vOG}, 9, {vOG}")
    o(f"v_lshl_add_u32 {vOG}, v254, 4, {vOG}")
    o(f"v_add_u32 {vOG2}, 4096, {vOG}")
    o(f"s_mov_b32 {sC}, {hex(f2u(math.log2(math.e) / 16.0))}")
    o(f"s_mov_b32 {sThr}, {hex(f2u(cfg.thr))}")
    o(f"s_mov_b32 {sThrC}, {sThr}")
    o(f"s_mov_b32 {sCnt}, 14")
    o("s_mov_b32 s52, 0xffff0000")
    o("s_mov_b32 s55, 0")
    if cfg.obias: o(f"s_mov_b32 s65, {hex(f2u(cfg.obias))}")
    o("s_mov_b32 s57, 1")
    if cfg.pfgap:
        o("s_lshl_b32 s58, s41, 2"); o("s_add_u32 s58, s58, s20")
        o(f"s_lshl_b32 s58, s58, {10 + cfg.pfsh}")
        o(f"s_add_u32 s59, s58, {(cfg.pfV[1] - 1) * (8192 << cfg.pfsh)}")
        o(f"s_add_u32 s51, s58, {cfg.pfK[1] * (8192 << cfg.pfsh)}")
        o(f"s_add_u32 s44, s4, {(32 - cfg.pfK[0]) * 32768}"); o("s_addc_u32 s45, s5, 0")
        o(f"s_mov_b32 s46, {cfg.pfK[0] * 32768}"); o("s_mov_b32 s47, 0x20000")
    o(f"s_add_u32 s53, {sVM}, {SLOT}")
    o(f"s_mov_b32 m0, {sVM}")
    def gsteps(m, so):
        o(f"s_movk_i32 s54, {m[0]}"); o(f"s_movk_i32 s56, {m[1]}"); o(f"s_movk_i32 s62, {m[2]}"); o(f"s_movk_i32 s63, {so}")
    gsteps((2 * BLK, 4 * BLK, 8 * BLK), 1024)
    o(f"v_mov_b32 v240, {vDK}")
    o(f"v_mov_b32 v{T0+10}, {sC}"); o(f"v_mov_b32 v{T0+11}, {sC}")
    ps(0)
    if cfg.stag & 2:
        o("s_bitcmp1_b32 s2, 0")
        o(f"s_cbranch_scc{cfg.stagpol} L_sg1")
        o("s_waitcnt vmcnt(0)")
        E.lab("L_sg1")
    if cfg.pstamp == 2: o("s_memtime s[94:95]")
    burst(sQ, "s50", QD[0], QD[1], POL['q'])
    if cfg.pstamp == 2: o("s_memtime s[96:97]")
    o("s_add_u32 s50, s50, 4096")
    o("s_waitcnt vmcnt(16)")
    o("s_barrier")
    ps(1)
    def kreg(ks, t): return Fr(8 * ks + t) if ks < 2 else f"a[{32*(ks-2)+4*t}:{32*(ks-2)+4*t+3}]"
    def kpre():
        for ks in range(4):
            for t in range(8): o(f"ds_read_b128 {kreg(ks,t)}, {vK} offset:{KS[0] + (16*(ks>>1)+(ks&1))*BLK + t*64}")
    def moves(qt):
        for i in range(32): o(f"v_accvgpr_write_b32 a{Qb(qt,0)[1]+i}, v{Qb(2,0)[1]+i}")
        for kk in range(2):
            for j in range(4): o(f"v_mov_b32 {Pe(0,kk,qt,j)}, {Pe(0,kk,2,j)}")
        for r in range(4): o(f"v_mov_b32 {NMe(qt,r)}, {NMe(2,0)}")
        o(f"v_mov_b32 {Lr(1,qt)}, {Lr(1,2)}")
    kpre()
    o("s_waitcnt vmcnt(8)")
    ps(2)
    E.lab("L_q")
    qt = 2
    for t in range(8):
        o(f"ds_read_b128 v[{QRAW+4*t}:{QRAW+4*t+3}], v248 offset:{t*64}")
    o("s_mov_b32 m0, s53")
    o("s_waitcnt lgkmcnt(0)")
    extra = []
    gray = [("add", 0), ("add", 1), ("sub", 0), ("add", 2), ("add", 0), ("sub", 1), ("sub", 0)]
    for n in range(8):
        e_ = [f"buffer_load_dwordx4 v240, {sQ}, s50 offen{POL['kv']} lds"]
        if n < 7:
            op, bit = gray[n]
            e_ += [f"s_{op}_u32 m0, m0, {['s54', 's56', 's62'][bit]}", f"s_{op}_u32 s50, s50, {['s63', 2048, 4096][bit]}"]
        extra.append(e_)
    for ks in range(4):
        for t in range(8):
            i = ks * 8 + t
            cc = "0" if t == 0 else Sr(ks, qt)
            o(f"v_mfma_f32_16x16x32_bf16 {Sr(ks,qt)}, {kreg(ks,t)}, v[{QRAW+4*t}:{QRAW+4*t+3}], {cc}")
            if i == cfg.gb:
                if cfg.stag & 4:
                    o("s_bitcmp1_b32 s2, 0")
                    o(f"s_cbranch_scc{cfg.stagpol} L_sg2")
                    o("s_waitcnt vmcnt(0)")
                    E.lab("L_sg2")
                o("s_barrier")
            if i > cfg.gb and (i - cfg.gb) % cfg.gs == 1 and extra:
                for s_ in extra.pop(0): o(s_)
            o(f"v_lshlrev_b32 v{2*i}, 16, v{QRAW+i}")
            o(f"v_and_b32 v{2*i+1}, s52, v{QRAW+i}")
    t_ = f"v{T0+8}"
    xs = [Se(ks, qt, r) for ks in range(4) for r in range(4)]
    xp = [f"v[{S0+12*ks+4*qt+2*h}:{S0+12*ks+4*qt+2*h+1}]" for ks in range(4) for h in range(2)]
    cc_ = f"v[{T0+10}:{T0+11}]"
    fill = [f"v_pk_mul_f32 v[{2*i}:{2*i+1}], v[{2*i}:{2*i+1}], {cc_}" for i in range(32)]
    fill += [f"v_cvt_pk_bf16_f32 v{Qb(2,0)[1]+i}, v{2*i}, v{2*i+1}" for i in range(32)]
    def F_(n):
        for _ in range(n):
            if fill: o(fill.pop(0))
    o(f"v_max3_f32 {t_}, {xs[0]}, {xs[1]}, {xs[2]}")
    for i in range(3, 11, 2): o(f"v_max3_f32 {t_}, {t_}, {xs[i]}, {xs[i+1]}")
    F_(4)
    for i in range(11, 15, 2): o(f"v_max3_f32 {t_}, {t_}, {xs[i]}, {xs[i+1]}")
    o(f"v_max_f32 {t_}, {t_}, {xs[15]}")
    u_ = f"v{T0+9}"
    for sw in ("v_permlane32_swap_b32", "v_permlane16_swap_b32"):
        o(f"v_mov_b32 {u_}, {t_}"); F_(2)
        o(f"{sw} {t_}, {u_}"); F_(2)
        o(f"v_max_f32 {t_}, {t_}, {u_}")
    o(f"v_mul_f32 {t_}, {sC}, {t_}")
    for r in range(4): o(f"v_sub_f32 {NMe(qt,r)}, {hex(f2u(cfg.refoff)) if cfg.refoff else 0}, {t_}")
    nmp = f"v[{208+4*qt}:{209+4*qt}]"
    for x in xp: o(f"v_pk_fma_f32 {x}, {x}, {cc_}, {nmp}")
    for i, x in enumerate(xs):
        o(f"v_exp_f32 {x}, {x}")
        if extra and i % 4 == 0:
            for s_ in extra.pop(0): o(s_)
    assert not extra
    F_(100)
    tp = f"v[{T0+8}:{T0+9}]"
    o(f"v_pk_add_f32 {tp}, {xp[0]}, {xp[1]}")
    for ks in range(4):
        for h in range(2):
            o(f"v_cvt_pk_bf16_f32 {Pe(0, ks>>1, qt, 2*(ks&1)+h)}, {Se(ks,qt,2*h)}, {Se(ks,qt,2*h+1)}")
            j = 2 * ks + h + 2
            if j < 8: o(f"v_pk_add_f32 {tp}, {tp}, {xp[j]}")
    o(f"v_add_f32 {Lr(1,qt)}, v{T0+8}, v{T0+9}")
    o("s_cmp_eq_u32 s55, 2")
    o("s_cbranch_scc1 L_qdone")
    o("s_cmp_eq_u32 s55, 1")
    o("s_cbranch_scc1 L_q1")
    ps(3)
    moves(0)
    o("s_mov_b32 s12, s4"); o("s_mov_b32 s13, s5"); o("s_mov_b32 s14, s6")
    o(f"s_add_u32 s50, {sKoff}, {32768-4096}")
    o(f"s_add_u32 s53, {sKM}, {KS[1]}")
    gsteps((BLK, 2 * BLK, 4 * BLK), 1024)
    o(f"v_subrev_u32 v248, {SLOT}, v248")
    o("s_mov_b32 s55, 1")
    o("s_waitcnt vmcnt(8)")
    ps(4)
    o("s_branch L_q")
    E.lab("L_q1")
    ps(5)
    moves(1)
    o("s_mov_b32 s12, s8"); o("s_mov_b32 s13, s9")
    o(f"s_mov_b32 s50, {sVoff}")
    o(f"s_mov_b32 s53, {sVM}")
    gsteps((8 * BLK, 2 * BLK, 4 * BLK), 512)
    o(f"v_mov_b32 v240, {vDV}")
    o(f"s_add_u32 {sVoff}, {sVoff}, 32768")
    o(f"s_add_u32 {sKoff}, {sKoff}, {2*32768-4096}")
    o(f"v_add_u32 v248, {SLOT}, v248")
    o("s_mov_b32 s55, 2")
    o("s_waitcnt vmcnt(8)")
    if cfg.stamp: o("s_memtime s[68:69]")
    o("s_branch L_q")
    E.lab("L_qdone")
    o("s_waitcnt vmcnt(8)")
    o("s_barrier")
    E.dsq = []; E.cov = 0
    for t in range(8): E.dsop(("K0", 0, t), 175 + 2 * t - 192, 1)
    if cfg.pfgap:
        o(f"v_lshlrev_b32 v254, {cfg.pfsh}, {vDK}")
        o(f"s_add_u32 s12, s8, {(32 - cfg.pfV[0]) * 32768}"); o("s_addc_u32 s13, s9, 0"); o(f"s_mov_b32 s14, {cfg.pfV[0] * 32768}")
    n = E.need_wait(E.frag_tags(0), -2)
    o(f"s_waitcnt lgkmcnt({n})")
    st0 = (list(E.dsq), E.cov)
    if 'm' in cfg.abl or 'M' in cfg.abl:
        o("v_and_b32 v244, 14, v251")
        o("v_cmp_eq_u32 vcc, 0, v244")
        o("v_mov_b32 v245, 0x3f803f80")
        for i in range(4): o(f"v_cndmask_b32 v{228+i}, 0, v245, vcc")
        for i in range(12): o(f"v_mov_b32 v{232+i}, 0")
        o("v_mov_b32 v244, 0x44444444")
        o("s_mov_b64 vcc, 0")
    if cfg.stamp:
        o("s_memtime s[70:71]")
    if cfg.istamp:
        o("s_memrealtime s[98:99]")
        o("s_mov_b32 s80, s60"); o("s_mov_b32 s81, s61"); o("s_mov_b32 s82, 0x100000"); o("s_mov_b32 s83, 0x20000")
        o("s_lshl_b32 s84, s2, 2"); o("s_add_u32 s84, s84, s20"); o("s_lshl_b32 s84, s84, 6")
        o(f"s_lshl_b32 s85, {sCnt}, 2"); o("s_add_u32 s84, s84, s85"); o("s_add_u32 s84, s84, 0x20000")
        o("s_waitcnt lgkmcnt(0)")
        o("v_mov_b32 v254, s98"); o("v_mov_b32 v255, 0")
        o("buffer_store_dword v254, v255, s[80:83], s84 offen")
    S0_ = build_schedule(cfg, 0, first=True)
    verify_frags(S0_, cfg)
    E.body(S0_, 0, first=True)
    assert (list(E.dsq), E.cov) == st0
    o("s_cmp_ge_u32 s20, 2")
    o("s_cbranch_vccnz L_tr_first")
    E.lab("L_ret_first")
    assert cfg.ncopy == 2
    o("s_cbranch_scc1 L_ret1")
    o("s_branch L_ret0")
    for c, S in enumerate(SS):
        E.L.append(".p2align 6")
        E.lab(f"L_loop{c}")
        E.inloop = True
        E.dsq, E.cov = list(st0[0]), st0[1]
        E.body(S, 0)
        assert (list(E.dsq), E.cov) == st0, (E.dsq, E.cov, st0)
        o(f"s_cbranch_vccnz L_tr{c}")
        E.lab(f"L_ret{c}")
        E.body(S, 1)
        assert (list(E.dsq), E.cov) == st0
        o(f"s_cbranch_vccz L_loop{c}")
        E.inloop = False
        o(f"s_call_b64 {sRet}, L_slow_1")
        o(f"s_branch L_loop{c}")
        E.lab(f"L_tr{c}")
        o(f"v_cmp_lt_f32 vcc, {sThr}, {vCHK}")
        o("s_nop 4")
        o(f"s_cbranch_vccz L_nos0_{c}")
        o(f"s_call_b64 {sRet}, L_slow_0")
        E.lab(f"L_nos0_{c}")
        o(f"s_cmp_lg_u32 {sCnt}, 0")
        o(f"s_cbranch_scc1 L_ret{c}")
        if c + 1 < len(SS): o("s_branch L_final")
    E.lab("L_final")
    if cfg.stamp:
        o("s_memtime s[72:73]")
    E.dsq, E.cov = list(st0[0]), st0[1]
    E.infinal = True
    E.final(SS[0])
    E.infinal = False
    if cfg.stamp:
        o("s_memtime s[74:75]")
        o("s_waitcnt vmcnt(0)")
        o("s_memtime s[76:77]")
        o("s_memrealtime s[78:79]")
        o("s_waitcnt lgkmcnt(0)")
        o("s_mov_b32 s80, s60"); o("s_mov_b32 s81, s61"); o("s_mov_b32 s82, 0x100000"); o("s_mov_b32 s83, 0x20000")
        regs = [64, 68, 70, 72, 74, 76, 66, 78]
        for i, r in enumerate(regs):
            o(f"v_mov_b32 v{96+i}, s{r}")
        o("v_mov_b32 v104, 0")
        o("s_lshl_b32 s84, s2, 2"); o("s_add_u32 s84, s84, s20"); o("s_lshl_b32 s84, s84, 5")
        o("buffer_store_dwordx4 v[96:99], v104, s[80:83], s84 offen")
        o("buffer_store_dwordx4 v[100:103], v104, s[80:83], s84 offen offset:16")
        if cfg.pstamp:
            o("s_add_u32 s84, s84, 65536")
            for i, r in enumerate([64, 86, 88, 90, 92, 94, 96, 68]):
                o(f"v_mov_b32 v{108+i}, s{r}")
            o("buffer_store_dwordx4 v[108:111], v104, s[80:83], s84 offen")
            o("buffer_store_dwordx4 v[112:115], v104, s[80:83], s84 offen offset:16")
    E.lab("L_end")
    o("s_endpgm")
    E.lab("L_codeend")
    E.lab("L_tr_first")
    o(f"s_call_b64 {sRet}, L_slow_0")
    o("s_branch L_ret_first")
    for sb in range(2):
        E.lab(f"L_trf{sb}")
        o(f"s_call_b64 {sRet}, L_slow_f{sb}")
        o(f"s_branch L_nosf{sb}")
    for par in range(2):
        E.slow(f"L_slow_{par}", par, par ^ 1, [])
    E.slow("L_slow_f0", 1, 0, [1])
    E.slow("L_slow_f1", 0, 2, [0, 1])
    o("s_endpgm")
    E.L.append('.section .rodata,"a"')
    E.L.append(".p2align 6")
    E.L.append(f".amdhsa_kernel {NAME}")
    E.L += ["  .amdhsa_next_free_vgpr 512", "  .amdhsa_next_free_sgpr 100", "  .amdhsa_accum_offset 256",
            "  .amdhsa_group_segment_fixed_size 0", "  .amdhsa_kernarg_size 48", "  .amdhsa_user_sgpr_count 2",
            "  .amdhsa_user_sgpr_kernarg_segment_ptr 1", "  .amdhsa_system_sgpr_workgroup_id_x 1",
            ".end_amdhsa_kernel"]
    return "\n".join(E.L) + "\n", SS[0]

def show(S):
    for g in range(192):
        print(g, mfma_desc(g), "cap", S["cap"][g], "| sc", [x[0] for x in S["scal"][g]], "| ds", S["ds"].get(g), "| dma", S["dma"].get(g), "|", S["vec"][g])

HEADER = """; Kernarg layout for this problem (48 bytes, ptrs only, base s[0:1]):
;
; Flash-attention forward, written with a hand-made generator script (no compiler output).
;  * one workgroup = 192 queries of one head, 4 waves x 48 queries, 512 registers per wave;
;  * K/V tiles of 64 keys stream through a 4-slot LDS ring by LDS-DMA (padded, conflict-free images)
;  * S^T = K Q^T and O = P V with v_mfma_f32_16x16x32_bf16; Q is pre-multiplied by log2(e)/sqrt(D)
;  * softmax reference = row max of the first key tile + 34 (log2 units), folded into the MFMA C operand; after every tile
;    the row sums are checked and, above 2^20, L_slow_* raises the reference to the running max
;    (rounded up to an integer) and rescales O, l and pending P by that exact power of two
;  * the PV products of the last three tiles are ordered so that the output is normalised,
;    transposed through LDS and stored while the remaining MFMAs run
"""

if __name__ == "__main__":
    cfg = Cfg()
    out = "standalone__mha_softmax__near_ridge.s"
    for a in sys.argv[1:]:
        if a == "show": continue
        if a.startswith("out="): out = a[4:]; continue
        k, v = a.split("=")
        assert hasattr(cfg, k), k
        setattr(cfg, k, eval(v))
    txt, S = gen(cfg)
    open(out, "w").write(HEADER + txt)
    if "show" in sys.argv: show(S)
```
